```python
import torch

def _softmax(x, axis=-1):
    return torch.softmax(x, dim=axis)
def _gelu(x):
    return torch.nn.functional.gelu(x, approximate="tanh")
def _silu(x):
    return torch.nn.functional.silu(x)
def _sigmoid(x):
    return torch.sigmoid(x)
def _layernorm(x, axis=-1, eps=1e-5):
    m = x.mean(dim=axis, keepdim=True)
    v = x.var(dim=axis, keepdim=True, unbiased=False)
    return (x - m) / torch.sqrt(v + eps)
def _scatter_add(tgt, idx, src, axis=0):
    return tgt.clone().index_add_(axis, idx, src)
def _segment_sum(src, seg, n):
    out = torch.zeros((n,) + src.shape[1:], dtype=src.dtype)
    return out.index_add_(0, seg, src)
def _pad(x, pw):
    flat = tuple(v for pair in reversed(pw) for v in pair)
    return torch.nn.functional.pad(x, flat)

kernel_name = 'recurrent_scan__mha_block_cached__dense_activation_silu__prompt'

def setup_inputs():

    _w = (lambda a: (lambda t: t.to(torch.bfloat16) if t.is_floating_point() else t)(torch.as_tensor(a)))
    def _A_setup():
        B, Sq, D = 1, 2048, 1024
        H, Sk, Dh = 32, 2048, 128
        return {
            "x": _w((lambda *s: torch.randn(*s, dtype=torch.bfloat16) * 0.05)(B, Sq, D)),
            "k_cache": _w((lambda *s: torch.randn(*s, dtype=torch.bfloat16) * 3.2)(B, H, Sk, Dh)),
            "v_cache": _w((lambda *s: torch.randn(*s, dtype=torch.bfloat16) * 3.2)(B, H, Sk, Dh)),
            "wq": _w((lambda *s: torch.randn(*s, dtype=torch.bfloat16) * 3.2)(D, H * Dh) * (D ** -0.5)),
            "wo": _w((lambda *s: torch.randn(*s, dtype=torch.bfloat16) * 3.2)(H * Dh, D) * ((H * Dh) ** -0.5)),
        }
    _A_in = _A_setup()

    def _B_setup():
        B, S, D, F = 1, 2048, 1024, 3584
        return {
            "x": _w((lambda *s: torch.randn(*s, dtype=torch.bfloat16) * 0.05)(B, S, D)),
            "w1": _w((lambda *s: torch.randn(*s, dtype=torch.bfloat16) * 3.2)(D, F) * (D ** -0.5)),
            "w2": _w((lambda *s: torch.randn(*s, dtype=torch.bfloat16) * 0.4)(F, D) * (F ** -0.5)),
        }
    _B_in = _B_setup()

    return {
        "A_x": _A_in["x"],
        "A_k_cache": _A_in["k_cache"],
        "A_v_cache": _A_in["v_cache"],
        "A_wq": _A_in["wq"],
        "A_wo": _A_in["wo"],
        "B_x": _B_in["x"],
        "B_w1": _B_in["w1"],
        "B_w2": _B_in["w2"],
    }

def reference(A_x, A_k_cache, A_v_cache, A_wq, A_wo, B_x, B_w1, B_w2):
    def _A_ref(x, k_cache, v_cache, wq, wo):
        B, Sq, D = x.shape
        H, Dh = 32, 128
        q = (lambda x, *d: x.permute(*d))((x @ wq).reshape(B, Sq, H, Dh), 0, 2, 1, 3)
        scores = torch.einsum("bhqd,bhkd->bhqk", q, k_cache) * (Dh ** -0.5)
        p = _softmax(scores, axis=-1)
        o = torch.einsum("bhqk,bhkd->bhqd", p, v_cache)
        return (lambda x, *d: x.permute(*d))(o, 0, 2, 1, 3).reshape(B, Sq, H * Dh) @ wo

    def _B_ref(x, w1, w2):
        h = torch.einsum("bsd,df->bsf", x, w1)
        h = _silu(h)
        out = torch.einsum("bsf,fd->bsd", h, w2)
        return out

    x = A_x
    xn = _layernorm(x, axis=-1)
    s = _A_ref(xn, A_k_cache, A_v_cache, A_wq, A_wo)
    g = _silu(_B_ref(xn, B_w1, B_w2))
    return x + s * g
```

```python
import re

REG_RE = re.compile(r'^(-)?(abs\()?\|?([vas])(?:(\d+)|\[(\d+):(\d+)\])\|?\)?$')

def regs_of(tok):
    tok = tok.strip()
    if tok in ('vcc', 'm0', 'exec', 'scc'):
        return [tok]
    if tok in ('vcc_lo', 'vcc_hi'):
        return ['vcc']
    if tok in ('exec_lo', 'exec_hi'):
        return ['exec']
    m = REG_RE.match(tok)
    if not m:
        return []
    f = m.group(3)
    if m.group(4) is not None:
        return [f + m.group(4)]
    return [f + str(i) for i in range(int(m.group(5)), int(m.group(6)) + 1)]

def split_ops(s):
    out, depth, cur = [], 0, ''
    for ch in s:
        if ch in '[(':
            depth += 1
        elif ch in '])':
            depth -= 1
        if ch == ',' and depth == 0:
            out.append(cur.strip()); cur = ''
        else:
            cur += ch
    if cur.strip():
        out.append(cur.strip())
    return out

TRANS = ('v_exp_f32', 'v_log_f32', 'v_rcp_f32', 'v_rsq_f32', 'v_sqrt_f32', 'v_sin_f32', 'v_cos_f32', 'v_rcp_iflag_f32')
SALU_NOWR = ('s_setpc', 's_cmp', 's_cbranch', 's_waitcnt', 's_barrier', 's_nop', 's_setprio', 's_sleep', 's_endpgm', 's_branch', 's_bitcmp')
SALU_SCC = ('s_add', 's_sub', 's_lshl', 's_lshr', 's_ashr', 's_and', 's_or', 's_xor', 's_andn2', 's_not', 's_min', 's_max', 's_cmp', 's_bitcmp', 's_bfe', 's_abs')

class I:
    def __init__(self, text, comment=None):
        self.text = text.strip()
        self.comment = comment
        self.rd = set(); self.wr = set()
        self.A = self.B = self.C = self.D = ()
        t = self.text
        if t.endswith(':'):
            self.kind = 'label'; self.op = t[:-1]; self.cost = 0; return
        if t.startswith('.') or t.startswith(';') or t == '':
            self.kind = 'dir'; self.op = t; self.cost = 0; return
        parts = t.split(None, 1)
        op = parts[0]; self.op = op
        rest = parts[1] if len(parts) > 1 else ''
        ops = split_ops(rest)
        mods = ''
        if ops:
            l = ops[-1].split(None, 1)
            ops[-1] = l[0]
            mods = l[1] if len(l) > 1 else ''
        self.ops = ops; self.mods = mods
        R = [regs_of(o) for o in ops]
        self.cost = 4
        if op.startswith('v_mfma'):
            self.kind = 'mfma'
            self.passes = 8 if '32x32x16' in op else 4
            self.D, self.A, self.B, self.C = [tuple(x) for x in R[:4]]
            self.wr = set(R[0]); self.rd = set(R[1] + R[2] + R[3]); self.cost = 8
        elif op.startswith('v_'):
            base = op.replace('_e32', '').replace('_e64', '').replace('_dpp', '').replace('_sdwa', '')
            self.kind = 'trans' if base in TRANS else 'valu'
            if self.kind == 'trans': self.cost = 8
            if op.startswith('v_cmp'):
                self.wr = set(R[0]); self.rd = set(sum(R[1:], []))
                if op.startswith('v_cmpx'): self.wr.add('exec')
            elif op.startswith('v_permlane') and 'swap' in op:
                self.wr = set(R[0] + R[1]); self.rd = set(R[0] + R[1])
            elif op.startswith(('v_add_co', 'v_sub_co', 'v_addc_co', 'v_subb_co')):
                self.wr = set(R[0] + R[1]); self.rd = set(sum(R[2:], []))
            elif op == 'v_nop':
                pass
            else:
                self.wr = set(R[0]); self.rd = set(sum(R[1:], []))
                if base.startswith(('v_fmac', 'v_dot2c', 'v_pk_fmac')) or '_dpp' in op or 'writelane' in op:
                    self.rd |= set(R[0])
            self.dpp = '_dpp' in op
        elif op.startswith('ds_'):
            if op.startswith(('ds_read', 'ds_bpermute', 'ds_permute', 'ds_swizzle')):
                self.kind = 'lds_rd'; self.wr = set(R[0]); self.rd = set(sum(R[1:], []))
            else:
                self.kind = 'lds_wr'; self.rd = set(sum(R, []))
        elif op.startswith(('buffer_', 'global_')):
            allm = (' ' + mods + ' ')
            if op.startswith(('buffer_wbl2', 'buffer_inv')):
                self.kind = 'vm_st'
            elif ' lds ' in allm or op.startswith('global_load_lds'):
                self.kind = 'dma'; self.rd = set(sum(R, [])) | {'m0'}
            elif '_load' in op:
                self.kind = 'vm_ld'; self.wr = set(R[0]); self.rd = set(sum(R[1:], []))
            elif '_atomic' in op and ' sc0 ' in allm:
                self.kind = 'vm_ld'; self.wr = set(R[0]); self.rd = set(sum(R, []))
            else:
                self.kind = 'vm_st'; self.rd = set(sum(R, []))
                self.data = set(R[0]) if op.startswith('buffer_') else set(R[1])
                self.wide = op.endswith(('x3', 'x4'))
        elif op.startswith(('s_load', 's_memtime', 's_memrealtime', 's_buffer_load')):
            self.kind = 'smem'; self.wr = set(R[0]); self.rd = set(sum(R[1:], []))
        elif op.startswith('s_'):
            if op == 's_waitcnt': self.kind = 'wait'
            elif op == 's_barrier': self.kind = 'barrier'
            elif op == 's_nop': self.kind = 'nop'
            elif op.startswith(('s_cbranch', 's_branch')): self.kind = 'branch'
            elif op == 's_endpgm': self.kind = 'end'
            else: self.kind = 'salu'
            if op.startswith(SALU_NOWR):
                self.rd = set(sum(R, []))
            else:
                self.wr = set(R[0]); self.rd = set(sum(R[1:], []))
                if op.startswith(('s_addk', 's_mulk', 's_cmov')):
                    self.rd |= set(R[0])
            if op.startswith(SALU_SCC): self.wr.add('scc')
            if op.startswith(('s_cselect', 's_addc', 's_subb', 's_cmov', 's_cbranch_scc')): self.rd.add('scc')
            if op.startswith('s_cbranch_vcc'): self.rd.add('vcc')
            if 'saveexec' in op: self.wr.add('exec'); self.rd.add('exec')
            if op == 's_nop':
                self.states = int(ops[0], 0) + 1
                self.cost = 4 * self.states
        else:
            raise ValueError('unknown instr ' + t)

    def __str__(self):
        if self.kind == 'label': return self.text
        s = '    ' + self.text
        if self.comment: s += '    ; ' + self.comment
        return s

    @property
    def nstates(self):
        if self.kind in ('label', 'dir'): return 0
        if self.kind == 'nop': return self.states
        return 1

def parse_wait(ins):
    vm = lg = None
    m = re.search(r'vmcnt\((\d+)\)', ins.text)
    if m: vm = int(m.group(1))
    m = re.search(r'lgkmcnt\((\d+)\)', ins.text)
    if m: lg = int(m.group(1))
    return vm, lg

def is_valu(i): return i.kind in ('valu', 'trans')

def check_path(path, name='', verbose=True):
    probs = []
    seq = [i for i in path if i.kind not in ('label', 'dir')]
    pos = []; p = 0
    for i in seq:
        pos.append(p); p += i.nstates
    def dist(a, b):
        return pos[b] - pos[a] - seq[a].nstates + 0
    last_valu_wr = {}; last_mfma_wr = {}; last_mfma_c = {}; last_trans_wr = {}
    last_valu_swr = {}; last_m0 = None; last_store = []
    lq = []; vq = []
    def P(b, msg):
        probs.append(f'{name}[{b}] {seq[b].text}: {msg}')
    for b, ins in enumerate(seq):
        k = ins.kind
        touched = ins.rd | ins.wr
        if k != 'wait':
            for (a, regs, kk) in lq:
                if regs & touched: P(b, f'touches {sorted(regs & touched)[:3]} of un-waited LDS/SMEM op {seq[a].text}')
            for (a, regs) in vq:
                if (regs & touched) - {'v255'}: P(b, f'touches {sorted(regs & touched)[:3]} of un-waited VMEM op {seq[a].text}')
        if k == 'wait':
            vm, lg = parse_wait(ins)
            if vm is not None:
                while len(vq) > vm: vq.pop(0)
            if lg is not None:
                if any(kk == 'smem' for (_, _, kk) in lq):
                    if lg == 0: lq.clear()
                else:
                    while len(lq) > lg: lq.pop(0)
        if k == 'mfma':
            for r in ins.rd:
                if r in last_valu_wr and dist(last_valu_wr[r], b) < 2: P(b, f'VALU write {r} -> MFMA read needs 2')
            for r in set(ins.A) | set(ins.B):
                if r in last_mfma_wr:
                    a = last_mfma_wr[r]; need = {8: 12, 4: 8}[seq[a].passes]
                    if dist(a, b) < need: P(b, f'MFMA D {r} -> MFMA A/B needs {need}')
            for r in ins.C:
                if r in last_mfma_wr:
                    a = last_mfma_wr[r]
                    if seq[a].D == ins.C and seq[a].passes == ins.passes: continue
                    need = {8: 10, 4: 6}[seq[a].passes]
                    if dist(a, b) < need: P(b, f'MFMA D {r} -> MFMA C overlap needs {need}')
            for r in ins.D:
                if r in last_mfma_wr and r not in ins.C:
                    a = last_mfma_wr[r]
                    need = {8: 10, 4: 6}[seq[a].passes]
                    if dist(a, b) < need: P(b, f'MFMA D {r} -> MFMA D WAW needs {need}')
        if is_valu(ins) or k in ('lds_rd', 'lds_wr', 'vm_ld', 'vm_st', 'dma'):
            for r in touched:
                if r in last_mfma_wr:
                    a = last_mfma_wr[r]; need = {8: 12, 4: 8}[seq[a].passes]
                    if dist(a, b) < need: P(b, f'MFMA D {r} -> access needs {need} (have {dist(a,b)})')
        if is_valu(ins) or k in ('lds_rd', 'vm_ld'):
            for r in ins.wr:
                if r in last_mfma_c:
                    a = last_mfma_c[r]; need = {8: 7, 4: 3}[seq[a].passes]
                    if dist(a, b) < need: P(b, f'MFMA reads C {r} -> write needs {need}')
        if is_valu(ins):
            if k == 'valu':
                for r in ins.rd:
                    if r in last_trans_wr and dist(last_trans_wr[r], b) < 1: P(b, f'trans {r} -> VALU needs 1')
            for r in ins.rd:
                if (r[0] == 's' or r == 'vcc') and r in last_valu_swr:
                    need = 4 if ('readlane' in ins.op or 'writelane' in ins.op) else 2
                    if dist(last_valu_swr[r], b) < need: P(b, f'VALU writes {r} -> VALU read needs {need}')
            if 'readfirstlane' in ins.op or 'readlane' in ins.op:
                for r in ins.rd:
                    if r in last_valu_wr and dist(last_valu_wr[r], b) < 1: P(b, f'VALU write {r} -> readlane needs 1')
            if 'permlane' in ins.op or getattr(ins, 'dpp', False):
                for r in ins.rd:
                    if r in last_valu_wr and dist(last_valu_wr[r], b) < 2: P(b, f'VALU write {r} -> permlane/dpp needs 2')
            for (a, data) in last_store:
                if data & ins.wr and dist(a, b) < 2: P(b, f'wide store data WAR needs 2')
        if k in ('lds_rd', 'vm_ld'):
            for (a, data) in last_store:
                if data & ins.wr and dist(a, b) < 1: P(b, f'wide store data WAR needs 1')
        if k in ('vm_ld', 'vm_st', 'dma'):
            for r in ins.rd:
                if r[0] == 's' and r in last_valu_swr and dist(last_valu_swr[r], b) < 5: P(b, f'VALU writes {r} -> VMEM needs 5')
        if k == 'dma' and last_m0 is not None and dist(last_m0, b) < 1: P(b, 'm0 write -> DMA needs 1')
        if k in ('salu', 'branch'):
            for r in ins.rd:
                if (r[0] == 's' and r != 'scc' or r == 'vcc') and r in last_valu_swr and dist(last_valu_swr[r], b) < 1 and k == 'salu':
                    pass
        if is_valu(ins):
            for r in ins.wr:
                if r[0] in 'va' and r != 'vcc': last_valu_wr[r] = b
                else: last_valu_swr[r] = b
                last_mfma_wr.pop(r, None)
                if k == 'trans': last_trans_wr[r] = b
                else: last_trans_wr.pop(r, None)
        if k == 'mfma':
            for r in ins.D: last_mfma_wr[r] = b; last_valu_wr.pop(r, None)
            for r in ins.C: last_mfma_c[r] = b
        if k == 'salu':
            if 'm0' in ins.wr: last_m0 = b
            for r in ins.wr: last_valu_swr.pop(r, None)
        if k in ('lds_rd', 'lds_wr'): lq.append((b, set(ins.wr), 'lds'))
        if k == 'smem': lq.append((b, set(ins.wr), 'smem'))
        if k in ('vm_ld', 'vm_st', 'dma'): vq.append((b, set(ins.wr)))
        if k == 'vm_st' and getattr(ins, 'wide', False): last_store.append((b, ins.data)); last_store = last_store[-4:]
        if len(vq) > 63: P(b, 'vmcnt overflow (>63 outstanding)')
    return probs

def auto_lgkm(body, pre_state=None, age=6):
    q = []
    for x in (pre_state or []):
        q.append([set(x[0]), x[1]] if isinstance(x, (tuple, list)) else [set(x), 0])
    out = []
    for ins in body:
        if ins.kind == 'wait':
            vm, lg = parse_wait(ins)
            if lg is not None:
                while len(q) > lg: q.pop(0)
            out.append(ins); continue
        touched = ins.rd | ins.wr
        need = None
        for idx, (regs, ag) in enumerate(q):
            if regs & touched: need = idx
        if need is not None:
            for idx, (regs, ag) in enumerate(q):
                if ag >= age: need = max(need, idx)
            n = min(len(q) - 1 - need, 15)
            out.append(I(f's_waitcnt lgkmcnt({n})'))
            while len(q) > n: q.pop(0)
        out.append(ins)
        if ins.kind == 'mfma':
            for e in q: e[1] += 1
        if ins.kind in ('lds_rd', 'lds_wr'): q.append([set(ins.wr), 0])
    return out, [(e[0], e[1]) for e in q]

def auto_lgkm_loop(body):
    _, st = auto_lgkm(body)
    b2, st2 = auto_lgkm(body, st)
    b3, st3 = auto_lgkm(body, st2)
    assert [i.text for i in b2] == [i.text for i in b3]
    return b2, st2

def L(lines):
    if isinstance(lines, str): lines = lines.split('\n')
    out = []
    for l in lines:
        if isinstance(l, I): out.append(l); continue
        s = l.split(';')[0].strip()
        c = l.split(';', 1)[1].strip() if ';' in l else None
        if not s: continue
        out.append(I(s, c))
    return out

def vr(base, n=1, f='v'):
    return f'{f}{base}' if n == 1 else f'{f}[{base}:{base + n - 1}]'
def ar(base, n=1): return vr(base, n, 'a')
def sr(base, n=1): return vr(base, n, 's')

def interleave(mfmas, gaps, pre=None):
    out = list(pre or [])
    for n, m in enumerate(mfmas):
        out.append(m)
        out.extend(gaps.get(n, []))
    return out

def kernel_text(name, body, vgpr, accum_offset, sgpr=102):
    s = f'.globl {name}\n.p2align 8\n.type {name},@function\n{name}:\n'
    s += '\n'.join(str(i) for i in body) + '\n'
    return s

def kd_text(name, nfv, accum_offset, sgpr=102):
    return (f'.p2align 6\n.amdhsa_kernel {name}\n  .amdhsa_next_free_vgpr {nfv}\n  .amdhsa_next_free_sgpr {sgpr}\n'
            f'  .amdhsa_accum_offset {accum_offset}\n  .amdhsa_group_segment_fixed_size 0\n  .amdhsa_kernarg_size 88\n'
            f'  .amdhsa_user_sgpr_count 2\n  .amdhsa_user_sgpr_kernarg_segment_ptr 1\n  .amdhsa_system_sgpr_workgroup_id_x 1\n'
            f'.end_amdhsa_kernel\n')

def walk(code, decisions, maxlen=200000):
    labels = {i.op: n for n, i in enumerate(code) if i.kind == 'label'}
    dec = {k: list(v) for k, v in decisions.items()}
    out = []; pc = 0; stack = []
    while pc < len(code) and len(out) < maxlen:
        ins = code[pc]; out.append(ins)
        if ins.kind == 'end': break
        if ins.op == 's_call_b64':
            stack.append(pc + 1); pc = labels[ins.ops[1]]; continue
        if ins.op == 's_setpc_b64':
            pc = stack.pop(); continue
        if ins.kind == 'branch':
            tgt = ins.ops[0]
            if ins.op == 's_branch': pc = labels[tgt]; continue
            d = dec.get(tgt)
            if d and d.pop(0): pc = labels[tgt]; continue
        pc += 1
    return out

def check_all(code, paths, name):
    n = 0
    for d in paths:
        pr = check_path(walk(code, d), name)
        for p in pr[:20]: print('HAZARD', p)
        n += len(pr)
    return n

def stamp(k, base=64):
    return L(f's_memtime s[{base+2*k}:{base+2*k+1}]')
def rstamp(k, base=64):
    return L(f's_memrealtime s[{base+2*k}:{base+2*k+1}]')
def stamp_flush(n, ws_lo, ws_hi, off, wave_sgpr, vt, base=64, srd=96, label='st'):
    t = f'''s_waitcnt lgkmcnt(0)
    s_add_u32 s{srd}, s{ws_lo}, {off}
    s_addc_u32 s{srd+1}, s{ws_hi}, 0
    s_mov_b32 s{srd+2}, {1<<20}
    s_mov_b32 s{srd+3}, 0x20000
    s_lshl_b32 s{srd+4}, s2, 2
    s_add_u32 s{srd+4}, s{srd+4}, s{wave_sgpr}
    s_lshl_b32 s{srd+4}, s{srd+4}, 6
    s_mov_b64 exec, 1
    '''
    for k in range(n):
        t += f'v_mov_b32 v{vt}, s{base+2*k}\nbuffer_store_dword v{vt}, off, s[{srd}:{srd+3}], s{srd+4} offset:{4*k}\n'
    t += 's_waitcnt vmcnt(0)\ns_mov_b64 exec, -1\n'
    return L(t)
```

```python
import sys
from asmlib import *
from common import *

HEADER = open('cdna_kernels/' + KNAME + '.s.ref').read().split('; Override launch')[0]

def build(kernels, launches, path):
    s = HEADER
    for (n, g, b, lds) in launches:
        s += f'; @launch kernel={n} grid=({g},1,1) block=({b},1,1) lds={lds}\n'
    s += '.amdgcn_target "amdgcn-amd-amdhsa--gfx950"\n.text\n'
    for (n, code, nfv, ao) in kernels:
        s += kernel_text(n, code, nfv, ao)
    s += '.section .rodata,"a"\n'
    for (n, code, nfv, ao) in kernels:
        s += kd_text(n, nfv, ao)
    open(path, 'w').write(s)
```

```python
MB = 1 << 20
WS_XN = 0
WS_H = 4 * MB
WS_O = 20 * MB
WS_G = 36 * MB
WS_FLAG = 40 * MB
WS_SIZE = 268435456
KNAME = 'recurrent_scan__mha_block_cached__dense_activation_silu__prompt'
KA_X, KA_K, KA_V, KA_WQ, KA_WO, KA_BX, KA_W1, KA_W2, KA_OUT, KA_DBG, KA_WS = [8 * i for i in range(11)]
WS_STAMP = 48 * MB
```

```python
from asmlib import *
from sched import *
from common import *

MF = 'v_mfma_f32_16x16x32_bf16'
SLOT = 33280

def silu_pair(a, b, t1, t2, sneg, dst, rnd=None):
    s = ''
    if rnd is not None:
        s += f'v_cvt_pk_bf16_f32 v{rnd}, v{a}, v{b}\nv_lshlrev_b32 v{a}, 16, v{rnd}\nv_and_b32 v{b}, 0xffff0000, v{rnd}\n'
    s += f'''v_mul_f32 v{t1}, s{sneg}, v{a}
    v_mul_f32 v{t2}, s{sneg}, v{b}
    v_exp_f32 v{t1}, v{t1}
    v_exp_f32 v{t2}, v{t2}
    v_add_f32 v{t1}, 1.0, v{t1}
    v_add_f32 v{t2}, 1.0, v{t2}
    v_rcp_f32 v{t1}, v{t1}
    v_rcp_f32 v{t2}, v{t2}
    v_mul_f32 v{a}, v{a}, v{t1}
    v_mul_f32 v{b}, v{b}, v{t2}
    v_cvt_pk_bf16_f32 v{dst}, v{a}, v{b}'''
    return s

def gen_gemm2(name='gemm2_kernel', stamp=False, opt=None):
    opt = opt or {}
    BARG = opt.get('barg', 10)
    pre = []
    E = lambda t: pre.extend(L(t))
    SACT, SW, SG, SX, SOUT = 8, 12, 16, 20, 24
    sCNT, sAOFF, sWOFF, sWA, sWW, sWAVE, sTYPE, sTILE, sT0, sT1, sC1, sC2, sC3, sRB, sCB = range(28, 43)
    ACC = 0
    FA = 64
    FB = 96
    XP = 160
    GP = 192
    vA = [224, 225]; vB = [226, 227]
    vDa = [228, 229]; vDw = [230, 231, 232, 233]
    vL = 234; vT = list(range(235, 243)); vXo = 243; vGo = 244
    NV = 248
    E(f'''
    s_cmp_ge_u32 s2, 256
    s_cbranch_scc1 {name}_end
    s_load_dwordx2 s[4:5], s[0:1], {KA_WS}
    s_load_dwordx2 s[6:7], s[0:1], {KA_WO}
    s_load_dwordx2 s[44:45], s[0:1], {KA_W2}
    s_load_dwordx2 s[46:47], s[0:1], {KA_X}
    s_load_dwordx2 s[48:49], s[0:1], {KA_OUT}
    {'s_memtime s[64:65]' if stamp else ''}
    {'s_memrealtime s[66:67]' if stamp else ''}
    v_and_b32 v{vL}, 63, v0
    v_lshrrev_b32 v{vT[0]}, 6, v0
    s_nop 0
    v_readfirstlane_b32 s{sWAVE}, v{vT[0]}
    s_and_b32 s{sT0}, s2, 7          ; xcd
    s_lshr_b32 s{sT1}, s2, 3         ; j 0..31
    ''')
    if opt.get('map', 0) == 0:
        E(f'''
        s_lshr_b32 s{sTYPE}, s{sT0}, 2   ; 0 = f, 1 = s
        s_and_b32 s{sT0}, s{sT0}, 3
        s_lshr_b32 s{sRB}, s{sT0}, 1
        s_lshl_b32 s{sRB}, s{sRB}, 3
        s_lshr_b32 s{sCB}, s{sT1}, 2
        s_add_u32 s{sRB}, s{sRB}, s{sCB}     ; rb128 = (q>>1)*8 + (j>>2)
        s_and_b32 s{sCB}, s{sT0}, 1
        s_lshl_b32 s{sCB}, s{sCB}, 2
        s_and_b32 s{sT1}, s{sT1}, 3
        s_add_u32 s{sCB}, s{sCB}, s{sT1}     ; cb128 = (q&1)*4 + (j&3)
        ''')
    else:
        E(f'''
        s_lshr_b32 s{sTYPE}, s{sT1}, 4
        s_and_b32 s{sT1}, s{sT1}, 15
        s_lshr_b32 s{sRB}, s{sT0}, 1
        s_lshl_b32 s{sRB}, s{sRB}, 2
        s_lshr_b32 s{sCB}, s{sT1}, 2
        s_add_u32 s{sRB}, s{sRB}, s{sCB}
        s_and_b32 s{sCB}, s{sT0}, 1
        s_lshl_b32 s{sCB}, s{sCB}, 2
        s_and_b32 s{sT1}, s{sT1}, 3
        s_add_u32 s{sCB}, s{sCB}, s{sT1}
        ''')
    E(f'''
    s_lshl_b32 s{sTILE}, s{sRB}, 3
    s_add_u32 s{sTILE}, s{sTILE}, s{sCB}
    s_lshl_b32 s{sWA}, s{sWAVE}, 12
    s_mul_i32 s{sWW}, s{sWAVE}, 4224
    v_lshrrev_b32 v{vT[0]}, 4, v{vL}          ; g = l>>4
    v_and_b32 v{vT[1]}, 15, v{vL}             ; l&15
    v_lshlrev_b32 v{vT[2]}, 15, v{vT[0]}
    v_lshl_add_u32 v{vT[2]}, v{vT[1]}, 4, v{vT[2]}
    s_lshl_b32 s{sT0}, s{sWAVE}, 13
    s_lshl_b32 s{sT1}, s{sCB}, 8
    s_add_u32 s{sT0}, s{sT0}, s{sT1}
    v_add_u32 v{vDw[0]}, s{sT0}, v{vT[2]}
    v_add_u32 v{vDw[1]}, {992}, v{vDw[0]}
    v_add_u32 v{vDw[2]}, {2*992}, v{vDw[0]}
    v_add_u32 v{vDw[3]}, {3*992}, v{vDw[0]}
    s_waitcnt lgkmcnt(0)
    s_cmp_eq_u32 s{sTYPE}, 1
    s_mov_b32 s{sT0}, {WS_H}
    s_cmov_b32 s{sT0}, {WS_O}
    s_add_u32 s{SACT}, s4, s{sT0}
    s_addc_u32 s{SACT+1}, s5, 0
    s_cmp_eq_u32 s{sTYPE}, 1
    s_mov_b32 s{SACT+2}, {2048*3584*2}
    s_cmov_b32 s{SACT+2}, {2048*4096*2}
    s_mov_b32 s{SACT+3}, 0x20000
    s_cselect_b32 s{SW}, s6, s44
    s_cselect_b32 s{SW+1}, s7, s45
    s_mov_b32 s{SW+2}, {3584*1024*2}
    s_cmov_b32 s{SW+2}, {4096*1024*2}
    s_mov_b32 s{SW+3}, 0x20000
    s_cselect_b32 s{sCNT}, 15, 13
    s_mov_b32 s{sT1}, {112*1024}
    s_cmov_b32 s{sT1}, {128*1024}
    s_lshl_b32 s{sT0}, s{sRB}, 2
    s_add_u32 s{sT0}, s{sT0}, s{sWAVE}
    s_lshl_b32 s{sT0}, s{sT0}, 1
    s_mul_i32 s{sT0}, s{sT0}, s{sT1}
    v_lshlrev_b32 v{vDa[0]}, 4, v{vL}
    v_add_u32 v{vDa[0]}, s{sT0}, v{vDa[0]}
    s_sub_u32 s{sT1}, s{sT1}, 2048
    v_add_u32 v{vDa[1]}, s{sT1}, v{vDa[0]}
    s_mov_b32 s{sAOFF}, 0
    s_mov_b32 s{sWOFF}, 0
    ''')
    def dma_list(slot):
        g = []
        for j in range(4):
            x = []
            if j == 0: x += L(f's_add_u32 m0, s{sWA}, {slot*SLOT}\ns_nop 0' if False else f's_add_u32 m0, s{sWA}, {slot*SLOT}')
            g.append(x + L(f'buffer_load_dwordx4 v{vDa[j//2]}, s[{SACT}:{SACT+3}], s{sAOFF} offen offset:{1024*j} lds'))
        for j in range(4):
            x = []
            if j == 0: x += L(f's_add_u32 m0, s{sWW}, {slot*SLOT + 16384}')
            g.append(x + L(f'buffer_load_dwordx4 v{vDw[j]}, s[{SW}:{SW+3}], s{sWOFF} offen offset:{1056*j} lds'))
        return g
    def dma_flat(slot, parts=range(8)):
        out = []
        for n in parts:
            g = dma_list(slot)[n]
            if len(g) == 2: out += [g[0], I('s_nop 0'), g[1]]
            else: out += g
            if n == 3: out += L(f's_add_u32 s{sAOFF}, s{sAOFF}, 2048')
            if n == 7: out += L(f's_add_u32 s{sWOFF}, s{sWOFF}, 131072')
        return out
    NB_PART = opt.get('partb', 5)
    for s in range(3): pre.extend(dma_flat(s))
    pre.extend(dma_flat(3, range(NB_PART)))
    E(f'''
    s_add_u32 s{SG}, s4, {WS_G}
    s_addc_u32 s{SG+1}, s5, 0
    s_mov_b32 s{SG+2}, {4*MB + 128*128}
    s_mov_b32 s{SG+3}, 0x20000
    s_mov_b32 s{SX}, s46
    s_mov_b32 s{SX+1}, s47
    s_mov_b32 s{SX+2}, {4*MB}
    s_mov_b32 s{SX+3}, 0x20000
    s_mov_b32 s{SOUT}, s48
    s_mov_b32 s{SOUT+1}, s49
    s_mov_b32 s{SOUT+2}, {4*MB}
    s_mov_b32 s{SOUT+3}, 0x20000
    s_mov_b32 s{sC1}, 32768
    s_mov_b32 s{sC2}, 65536
    s_mov_b32 s{sC3}, 98304
    s_lshr_b32 s{sT0}, s{sWAVE}, 1          ; wm
    s_and_b32 s{sT1}, s{sWAVE}, 1           ; wn
    s_lshl_b32 s{sT0}, s{sT0}, 13
    v_lshlrev_b32 v{vB[0]}, 4, v{vL}
    v_add_u32 v{vB[0]}, s{sT0}, v{vB[0]}
    v_add_u32 v{vB[1]}, {2*SLOT}, v{vB[0]}
    v_lshrrev_b32 v{vT[2]}, 2, v{vL}
    v_mul_u32_u24 v{vT[2]}, 1056, v{vT[2]}
    v_and_b32 v{vT[3]}, 3, v{vL}
    v_lshl_add_u32 v{vT[2]}, v{vT[3]}, 3, v{vT[2]}
    s_lshl_b32 s{sT1}, s{sT1}, 7
    v_add_u32 v{vA[0]}, s{sT1}, v{vT[2]}
    v_add_u32 v{vA[1]}, {2*SLOT}, v{vA[0]}
    s_lshr_b32 s{sT0}, s{sWAVE}, 1
    s_lshl_b32 s{sT0}, s{sT0}, 6
    s_lshl_b32 s{sT1}, s{sRB}, 7
    s_add_u32 s{sT0}, s{sT0}, s{sT1}
    s_lshl_b32 s{sT0}, s{sT0}, 11
    s_and_b32 s{sT1}, s{sWAVE}, 1
    s_lshl_b32 s{sT1}, s{sT1}, 7
    s_add_u32 s{sT0}, s{sT0}, s{sT1}
    s_lshl_b32 s{sT1}, s{sCB}, 8
    s_add_u32 s{sT0}, s{sT0}, s{sT1}
    v_lshlrev_b32 v{vT[1]}, 11, v{vT[1]}
    v_lshlrev_b32 v{vT[0]}, 3, v{vT[0]}
    v_add3_u32 v{vXo}, v{vT[0]}, v{vT[1]}, s{sT0}
    s_lshl_b32 s{sT0}, s{sTILE}, 15
    s_lshl_b32 s{sT1}, s{sWAVE}, 13
    s_add_u32 s{sT0}, s{sT0}, s{sT1}
    v_lshlrev_b32 v{vGo}, 4, v{vL}
    v_add_u32 v{vGo}, s{sT0}, v{vGo}
    ''')
    for r in range(64): E(f'v_mov_b32 v{ACC + r}, 0')
    soj = ['0', f's{sC1}', f's{sC2}', f's{sC3}']
    def rdB(slot, jq, ks):
        return I(f'ds_read_b128 {vr(FB + (slot%2)*32 + jq*8 + ks*4, 4)}, v{vB[slot//2]} offset:{(slot%2)*SLOT + jq*2048 + ks*1024}')
    def rdA(slot, nb, ks, h):
        return I(f'ds_read_b64_tr_b16 {vr(FA + nb*8 + ks*4 + h*2, 2)}, v{vA[slot//2]} offset:{(slot%2)*SLOT + 16384 + (2*ks+h)*256 + nb*32}')
    def mfmas(slot):
        m = []
        for nb in range(4):
            for jq in range(4):
                for ks in range(2):
                    a = ACC + (nb*4 + jq)*4
                    m.append(I(f'{MF} {vr(a,4)}, {vr(FA + nb*8 + ks*4, 4)}, {vr(FB + (slot%2)*32 + jq*8 + ks*4, 4)}, {vr(a,4)}'))
        return m
    def stage(slot, dma_a, dma_b, vm, last=False, loop=None, verbose=False):
        it = []
        for ks in range(2):
            for h in range(2): it.append(Item([rdA(slot, 3, ks, h)], 0, 3))
        nx = (slot + 1) % 4
        def add_dma(sl, parts, lo, hi):
            prev = None
            n = len(parts)
            for q, p in enumerate(parts):
                g = dma_list(sl)[p]
                lo_q = lo + (hi - lo + 1) * q // n
                if len(g) == 2:
                    m = Item([g[0]], max(lo_q - 1, lo), hi, after=[(prev, 0)] if prev else ()); it.append(m)
                    d = Item([g[1]], lo_q, hi, units=2, after=[(m, 1)])
                else:
                    d = Item(g, lo_q, hi, units=2, after=[(prev, 0)] if prev else ())
                it.append(d); prev = d
                if p == 3: it.append(Item(f's_add_u32 s{sAOFF}, s{sAOFF}, 2048', lo, hi + 1, after=[(d, 0)]))
                if p == 7: it.append(Item(f's_add_u32 s{sWOFF}, s{sWOFF}, 131072', lo, hi + 1, after=[(d, 0)]))
        if dma_a: add_dma((slot + 3) % 4, list(range(NB_PART, 8)), 2, BARG - 1)
        if not last:
            it.append(Item(f's_waitcnt vmcnt({vm}) lgkmcnt(0)\ns_barrier', pin=BARG, units=2))
            b = BARG + 1
            for ks in range(2):
                for h in range(2): it.append(Item([rdA(nx, 0, ks, h)], b, 24))
            for jq in range(4):
                for ks in range(2): it.append(Item([rdB(nx, jq, ks)], b, 24 + 2*jq if jq < 3 else 29))
            for ks in range(2):
                for h in range(2): it.append(Item([rdA(nx, 1, ks, h)], 15, 30))
            for ks in range(2):
                for h in range(2): it.append(Item([rdA(nx, 2, ks, h)], 23, 31))
        if dma_b: add_dma(slot, list(range(NB_PART)), BARG + 1, 30)
        if loop:
            it.append(Item(f's_sub_u32 s{sCNT}, s{sCNT}, 1', 20, 28))
            it.append(Item(f's_cmp_lg_u32 s{sCNT}, 0\ns_cbranch_scc1 {loop}', pin=31))
        out = schedule(mfmas(slot), it, verbose=verbose, name=f'g2 slot{slot}')
        if loop:
            k = [n for n, i in enumerate(out) if i.kind == 'branch'][0]
            br = out[k-1:k+1]; out = out[:k-1] + out[k+1:] + br
        return out
    E(f's_waitcnt vmcnt({16 + NB_PART})\ns_barrier')
    if stamp: E('s_memtime s[68:69]\ns_waitcnt lgkmcnt(0)')
    init = [rdB(0, jq, ks) for jq in range(4) for ks in range(2)] + [rdA(0, nb, ks, h) for nb in range(3) for ks in range(2) for h in range(2)]
    init = [init[0], init[8], init[9], init[1], init[10], init[11]] + init[2:8] + init[12:]
    pre.extend(init)
    xl = []
    for nb in range(4):
        for jq in range(4):
            xl += L(f'buffer_load_dwordx2 {vr(XP + (nb*4+jq)*2, 2)}, v{vXo}, s[{SX}:{SX+3}], {soj[jq]} offen offset:{nb*32}')
    body = []
    for s in range(4): body += stage(s, True, True, 16, loop=(f'{name}_loop' if s == 3 else None), verbose=opt.get('v'))
    tail = stage(0, True, False, 16) + stage(1, False, False, 8) + stage(2, False, False, 0) + xl + stage(3, False, False, 0, last=True)
    pre.append(I('s_waitcnt lgkmcnt(0)'))
    body2, st2 = auto_lgkm_loop(body)
    tail2, _ = auto_lgkm(tail, st2)
    code = pre + L(f'{name}_loop:') + body2 + tail2
    epi = []
    X = lambda t: epi.extend(L(t))
    if stamp: X('s_memtime s[70:71]')
    X(f'''s_cmp_eq_u32 s{sTYPE}, 1
    s_cbranch_scc1 {name}_sepi
    s_mov_b32 s{sT0}, 0xbfb8aa3b
    s_mov_b32 s{sT1}, 4096
    s_nop 4''')
    for q in range(32):
        a, b = ACC + 2*q, ACC + 2*q + 1
        t0, t1, t2, t3 = vT[(q % 2)*4: (q % 2)*4 + 4]
        X(silu_pair(a, b, t1, t2, sT0, GP + q, rnd=t0))
        if q % 4 == 3:
            c = q // 4
            X(f'buffer_store_dwordx4 {vr(GP + c*4, 4)}, v{vGo}, s[{SG}:{SG+3}], ' + ('0' if c < 4 else f's{sT1}') + f' offen offset:{(c%4)*1024} sc0 sc1')
    if stamp:
        X('s_memtime s[72:73]\ns_waitcnt vmcnt(0)\ns_memtime s[74:75]\ns_memrealtime s[76:77]')
        epi.extend(stamp_flush(7, 4, 5, WS_STAMP, sWAVE, vT[0]))
    X(f'''s_waitcnt vmcnt(0)
    s_barrier
    s_cmp_lg_u32 s{sWAVE}, 0
    s_cbranch_scc1 {name}_end
    s_lshl_b32 s{sT0}, s{sTILE}, 7
    s_add_u32 s{sT0}, s{sT0}, {4*MB}
    v_mov_b32 v{vT[0]}, 1
    s_mov_b64 exec, 1
    buffer_store_dword v{vT[0]}, off, s[{SG}:{SG+3}], s{sT0} sc0 sc1
    s_endpgm
    {name}_sepi:
    s_lshl_b32 s{sT0}, s{sTILE}, 7
    s_add_u32 s{sT0}, s{sT0}, {4*MB}
    {name}_poll:
    buffer_load_dword v{vT[0]}, off, s[{SG}:{SG+3}], s{sT0} sc0 sc1
    s_waitcnt vmcnt(0)
    v_readfirstlane_b32 s{sT1}, v{vT[0]}
    s_cmp_eq_u32 s{sT1}, 1
    s_cbranch_scc1 {name}_go
    s_sleep 2
    s_branch {name}_poll
    {name}_go:
    {'s_memtime s[72:73]' if stamp else ''}
    s_mov_b32 s{sT1}, 4096''')
    for c in range(8):
        X(f'buffer_load_dwordx4 {vr(GP + c*4, 4)}, v{vGo}, s[{SG}:{SG+3}], ' + ('0' if c < 4 else f's{sT1}') + f' offen offset:{(c%4)*1024} sc0 sc1')
    for c in range(8):
        X(f's_waitcnt vmcnt({7 + c})')
        for d in range(4):
            q = c*4 + d
            a, b = ACC + 2*q, ACC + 2*q + 1
            t0, t1, t2, t3 = vT[(q % 2)*4: (q % 2)*4 + 4]
            X(f'''v_lshlrev_b32 v{t0}, 16, v{GP+q}
            v_and_b32 v{t1}, 0xffff0000, v{GP+q}
            v_lshlrev_b32 v{t2}, 16, v{XP+q}
            v_and_b32 v{t3}, 0xffff0000, v{XP+q}
            v_fma_f32 v{a}, v{a}, v{t0}, v{t2}
            v_fma_f32 v{b}, v{b}, v{t1}, v{t3}
            v_cvt_pk_bf16_f32 v{XP + q}, v{a}, v{b}''')
            if d % 2 == 1:
                blk = q // 2; nb, jq = blk // 4, blk % 4
                X(f'buffer_store_dwordx2 {vr(XP + blk*2, 2)}, v{vXo}, s[{SOUT}:{SOUT+3}], {soj[jq]} offen offset:{nb*32}')
    if stamp:
        X('s_waitcnt vmcnt(0)\ns_memtime s[74:75]\ns_memrealtime s[76:77]')
        epi.extend(stamp_flush(7, 4, 5, WS_STAMP, sWAVE, vT[0]))
    X(f'{name}_end:\ns_endpgm')
    code += epi
    return code, NV

def gemm2_paths(name='gemm2_kernel'):
    return [{f'{name}_loop': [1, 1, 0]}, {f'{name}_loop': [1, 0], f'{name}_sepi': [1], f'{name}_go': [0, 1]}]

if __name__ == '__main__':
    code, nv = gen_gemm2(opt=dict(v=True))
    print(len(code), check_all(code, gemm2_paths(), 'gemm2'))
```

```python
from asmlib import *
from common import *

def wsum(v, t):
    return f'''
    s_nop 1
    v_add_f32_dpp v{v}, v{v}, v{v} quad_perm:[1,0,3,2] row_mask:0xf bank_mask:0xf
    s_nop 1
    v_add_f32_dpp v{v}, v{v}, v{v} quad_perm:[2,3,0,1] row_mask:0xf bank_mask:0xf
    s_nop 1
    v_add_f32_dpp v{v}, v{v}, v{v} row_half_mirror row_mask:0xf bank_mask:0xf
    s_nop 1
    v_add_f32_dpp v{v}, v{v}, v{v} row_mirror row_mask:0xf bank_mask:0xf
    v_mov_b32 v{t}, v{v}
    s_nop 1
    v_permlane16_swap_b32 v{v}, v{t}
    v_add_f32 v{v}, v{v}, v{t}
    v_mov_b32 v{t}, v{v}
    s_nop 1
    v_permlane32_swap_b32 v{v}, v{t}
    v_add_f32 v{v}, v{v}, v{t}
    '''

def gen_ln(name='ln_kernel'):
    c = []
    E = lambda t: c.extend(L(t))
    E(f'''
    s_cmp_ge_u32 s2, 512
    s_cbranch_scc1 {name}_end
    s_load_dwordx2 s[4:5], s[0:1], {KA_X}
    s_load_dwordx2 s[6:7], s[0:1], {KA_WS}
    v_lshrrev_b32 v1, 6, v0
    v_and_b32 v2, 63, v0
    s_lshl_b32 s3, s2, 2
    v_add_u32 v1, s3, v1               ; row
    v_lshlrev_b32 v3, 11, v1
    v_lshrrev_b32 v5, 2, v2            ; ks
    v_lshl_add_u32 v3, v5, 6, v3
    v_and_b32 v6, 3, v2                ; g
    v_lshl_add_u32 v3, v6, 3, v3
    v_lshrrev_b32 v4, 4, v1
    v_lshlrev_b32 v4, 15, v4
    v_lshl_add_u32 v4, v5, 10, v4
    v_lshl_add_u32 v4, v6, 8, v4
    v_and_b32 v5, 15, v1
    v_lshl_add_u32 v4, v5, 4, v4
    s_waitcnt lgkmcnt(0)
    s_mov_b32 s8, s4
    s_mov_b32 s9, s5
    s_mov_b32 s10, {4*MB}
    s_mov_b32 s11, 0x20000
    s_mov_b32 s12, s6
    s_mov_b32 s13, s7
    s_mov_b32 s14, {WS_FLAG + 128*128}
    s_mov_b32 s15, 0x20000
    buffer_load_dwordx2 v[8:9], v3, s[8:11], 0 offen
    buffer_load_dwordx2 v[10:11], v3, s[8:11], 0 offen offset:32
    buffer_load_dwordx2 v[12:13], v3, s[8:11], 0 offen offset:1024
    buffer_load_dwordx2 v[14:15], v3, s[8:11], 0 offen offset:1056
    s_cmp_lg_u32 s2, 0
    s_cbranch_scc1 {name}_noflag
    v_lshlrev_b32 v6, 6, v0
    v_mov_b32 v7, 0
    s_mov_b32 s16, {WS_FLAG}
    buffer_store_dword v7, v6, s[12:15], s16 offen
    {name}_noflag:
    s_mov_b32 s17, 0xffff0000
    s_mov_b32 s18, 0x3a800000           ; 1/1024
    s_mov_b32 s19, 0x3727c5ac           ; 1e-5
    s_waitcnt vmcnt(0)
    ''')
    for i in range(8):
        E(f'v_lshlrev_b32 v{16+2*i}, 16, v{8+i}\nv_and_b32 v{17+2*i}, s17, v{8+i}')
    E('v_add_f32 v32, v16, v17')
    for i in range(2, 16): E(f'v_add_f32 v32, v32, v{16+i}')
    E(wsum(32, 33))
    E('v_mul_f32 v32, s18, v32')
    E('v_sub_f32 v34, v16, v32\nv_mul_f32 v35, v34, v34')
    for i in range(1, 16): E(f'v_sub_f32 v34, v{16+i}, v32\nv_fmac_f32 v35, v34, v34')
    E(wsum(35, 33))
    E('''
    v_mul_f32 v35, s18, v35
    v_cvt_pk_bf16_f32 v36, v32, v35
    v_lshlrev_b32 v32, 16, v36
    v_and_b32 v35, s17, v36
    v_add_f32 v35, s19, v35
    v_cvt_pk_bf16_f32 v35, v35, v35
    v_and_b32 v35, s17, v35
    v_sqrt_f32 v35, v35
    s_nop 0
    v_cvt_pk_bf16_f32 v35, v35, v35
    v_and_b32 v35, s17, v35
    v_rcp_f32 v35, v35
    ''')
    for i in range(8):
        a, b = 16 + 2*i, 17 + 2*i
        E(f'''v_sub_f32 v{a}, v{a}, v32
        v_sub_f32 v{b}, v{b}, v32
        v_cvt_pk_bf16_f32 v36, v{a}, v{b}
        v_lshlrev_b32 v{a}, 16, v36
        v_and_b32 v{b}, s17, v36
        v_mul_f32 v{a}, v{a}, v35
        v_mul_f32 v{b}, v{b}, v35
        v_cvt_pk_bf16_f32 v{8+i}, v{a}, v{b}''')
    E(f'''
    s_mov_b32 s16, 16384
    buffer_store_dwordx4 v[8:11], v4, s[12:15], 0 offen
    buffer_store_dwordx4 v[12:15], v4, s[12:15], s16 offen
    {name}_end:
    s_endpgm
    ''')
    return c, 40

if __name__ == '__main__':
    code, nv = gen_ln()
    print(len(code), check_all(code, [{}, {'ln_kernel_noflag': [1]}], 'ln'))
```

```python
from asmlib import *
from sched import *
from common import *

MF = 'v_mfma_f32_16x16x32_bf16'
SUB = 16896
SLOT = 2 * SUB
import struct
def f2u(x): return struct.unpack('<I', struct.pack('<f', x))[0]
QSCALE = (128 ** -0.5) * 1.4426950408889634

def gen_main(name='main_kernel', stamp=False, opt=None):
    opt = opt or {}
    V = opt.get('v', False)
    THR = f2u(2.0 ** opt.get('thr', 60))
    code = []
    E = lambda t: code.extend(L(t))
    SXN, SWQ, SW1, SK, SV, SH, SO = 8, 12, 16, 20, 24, 28, 32
    sXN, sWQ, sW1, sK, sV, sM, sWAVE, sHD, sHC, sRB, sT0, sT1, sCNT, sTHR, sJ1, sJ2, sJ3, sQS = range(36, 54)
    sQS = 54; sRET = 56; sNEG = 58
    WF = 128; vDq = [160, 161, 162, 163]; vD1 = [164, 165, 166, 167]; vDx = [168, 169, 170, 171]; vAq = [172, 173]
    Sb = [0, 64]; Pb = [128, 160]; NM = 192; TS = 208; LL = 224; ET = 228
    vK = [236, 237]; vV = [238, 239]; vDkv = 240; ONE = 244; vT = [241, 242, 243, 248, 249, 250]; vL = 251; vSt = 252
    vM = 253
    XB = 128; QF = 128; KF = 192; VF = 224
    E(f'''
    s_cmp_ge_u32 s2, 256
    s_cbranch_scc1 {name}_end
    s_load_dwordx2 s[4:5], s[0:1], {KA_WS}
    s_load_dwordx2 s[60:61], s[0:1], {KA_WQ}
    s_load_dwordx2 s[62:63], s[0:1], {KA_W1}
    s_load_dwordx4 s[92:95], s[0:1], {KA_K}
    {'s_memtime s[64:65]' if stamp else ''}
    {'s_memrealtime s[66:67]' if stamp else ''}
    v_and_b32 v{vL}, 63, v0
    v_lshrrev_b32 v{vT[0]}, 6, v0
    s_nop 0
    v_readfirstlane_b32 s{sWAVE}, v{vT[0]}
    s_and_b32 s{sT0}, s2, 7          ; xcd
    s_lshr_b32 s{sT1}, s2, 3         ; j
    s_lshr_b32 s{sRB}, s{sT1}, 2
    s_and_b32 s{sT1}, s{sT1}, 3      ; j&3
    s_lshl_b32 s{sHD}, s{sT0}, 2
    s_add_u32 s{sHD}, s{sHD}, s{sT1}
    s_mul_i32 s{sHC}, s{sT0}, 3
    s_add_u32 s{sHC}, s{sHC}, 4
    s_add_u32 s{sHC}, s{sHC}, s{sT1}
    s_mov_b32 s{SW1+2}, {1024*3584*2}
    s_mov_b32 s{SH+2}, {2048*3584*2}
    s_cmp_eq_u32 s{sT1}, 3
    s_cmov_b32 s{SW1+2}, 0
    s_cmov_b32 s{SH+2}, 0
    s_cmp_lt_u32 s{sT0}, 4
    s_cmov_b32 s{sHC}, s{sHD}
    s_cmov_b32 s{SW1+2}, {1024*3584*2}
    s_cmov_b32 s{SH+2}, {2048*3584*2}
    s_mul_i32 s{sM}, s{sWAVE}, 4224
    v_lshrrev_b32 v{vT[0]}, 4, v{vL}          ; g
    v_and_b32 v{vT[1]}, 15, v{vL}             ; l&15
    v_lshlrev_b32 v{vT[2]}, 4, v{vT[1]}       ; (l&15)*16
    v_lshl_add_u32 v{vDq[0]}, v{vT[0]}, 17, v{vT[2]}
    s_lshl_b32 s{sT0}, s{sWAVE}, 15
    s_lshl_b32 s{sT1}, s{sHD}, 8
    s_add_u32 s{sT0}, s{sT0}, s{sT1}
    v_add_u32 v{vDq[0]}, s{sT0}, v{vDq[0]}
    v_add_u32 v{vDq[1]}, {8192-1056}, v{vDq[0]}
    v_add_u32 v{vDq[2]}, {2*(8192-1056)}, v{vDq[0]}
    v_add_u32 v{vDq[3]}, {3*(8192-1056)}, v{vDq[0]}
    v_mul_u32_u24 v{vD1[0]}, {16*7168}, v{vT[0]}
    v_add_u32 v{vD1[0]}, v{vD1[0]}, v{vT[2]}
    s_mul_i32 s{sT0}, s{sWAVE}, {4*7168}
    s_lshl_b32 s{sT1}, s{sHC}, 8
    s_add_u32 s{sT0}, s{sT0}, s{sT1}
    v_add_u32 v{vD1[0]}, s{sT0}, v{vD1[0]}
    v_add_u32 v{vD1[1]}, {7168-1056}, v{vD1[0]}
    v_add_u32 v{vD1[2]}, {2*(7168-1056)}, v{vD1[0]}
    v_add_u32 v{vD1[3]}, {3*(7168-1056)}, v{vD1[0]}
    s_lshl_b32 s{sT0}, s{sRB}, 2
    s_add_u32 s{sT0}, s{sT0}, s{sWAVE}
    s_lshl_b32 s{sT1}, s{sT0}, 17
    v_lshlrev_b32 v{vSt}, 4, v{vL}
    v_add_u32 v{vDx[0]}, s{sT1}, v{vSt}
    v_add_u32 v{vDx[1]}, 0x8000, v{vDx[0]}
    v_add_u32 v{vDx[2]}, 0x10000, v{vDx[0]}
    v_add_u32 v{vDx[3]}, 0x18000, v{vDx[0]}
    v_lshl_add_u32 v{vDkv}, v{vT[0]}, 12, v{vT[2]}
    s_lshl_b32 s{sT1}, s{sWAVE}, 10
    v_add_u32 v{vDkv}, s{sT1}, v{vDkv}
    s_mov_b32 s{sXN}, 0
    s_mov_b32 s{sWQ}, 0
    s_mov_b32 s{sW1}, 0
    s_lshl_b32 s{sK}, s{sHD}, 19
    s_mov_b32 s{sV}, s{sK}
    s_waitcnt lgkmcnt(0)
    s_mov_b32 s{SXN}, s4
    s_mov_b32 s{SXN+1}, s5
    s_mov_b32 s{SXN+2}, {4*MB}
    s_mov_b32 s{SXN+3}, 0x20000
    s_mov_b32 s{SWQ}, s60
    s_mov_b32 s{SWQ+1}, s61
    s_mov_b32 s{SWQ+2}, {8*MB}
    s_mov_b32 s{SWQ+3}, 0x20000
    s_mov_b32 s{SW1}, s62
    s_mov_b32 s{SW1+1}, s63
    s_mov_b32 s{SW1+3}, 0x20000
    ''')
    def dmaW(slot, rel):
        g = []
        for (srd, vo, so, sub, step) in ((SWQ, vDq, sWQ, 0, 524288), (SW1, vD1, sW1, SUB, 458752)):
            for jj in range(4):
                pre = [I(f's_add_u32 m0, s{sM}, {slot*SLOT + sub}')] if jj == 0 else []
                d = vtag(I(f'buffer_load_dwordx4 v{vo[jj]}, s[{srd}:{srd+3}], s{so} offen offset:{1056*jj} lds'), 'dma', rel)
                post = [I(f's_add_u32 s{so}, s{so}, {step}')] if jj == 3 else []
                g.append((pre, d, post))
        return g
    def dmaKV(slot, rel, k=True, v=True):
        g = []
        for (on, srd, so, sub) in ((k, SK, sK, 0), (v, SV, sV, SUB)):
            if not on: continue
            for jj in range(4):
                pre = [I(f's_add_u32 m0, s{sM}, {slot*SLOT + sub + 800*jj}')]
                d = vtag(I(f'buffer_load_dwordx4 v{vDkv}, s[{srd}:{srd+3}], s{so} offen offset:{256*jj} lds'), 'dma', rel)
                post = [I(f's_add_u32 s{so}, s{so}, 16384')] if jj == 3 else []
                g.append((pre, d, post))
        return g
    def ldX(buf, rel):
        g = []
        for jq in range(4):
            for ks in range(2):
                d = vtag(I(f'buffer_load_dwordx4 {ar(XB + buf*32 + (jq*2+ks)*4, 4)}, v{vDx[jq]}, s[{SXN}:{SXN+3}], s{sXN} offen offset:{1024*ks}'), 'xn', rel)
                post = [I(f's_add_u32 s{sXN}, s{sXN}, 2048')] if (jq, ks) == (3, 1) else []
                g.append(([], d, post))
        return g
    def flat(g):
        out = []
        for (pre, d, post) in g:
            out += pre + ([I('s_nop 0')] if pre else []) + [d] + post
        return out
    def vm_items(g, lo, hi, it):
        prev = None; n = len(g)
        for q, (pre, d, post) in enumerate(g):
            lq = lo + (hi - lo) * q // n
            dep = [(prev, 0)] if prev else []
            if pre:
                m = Item(pre, max(lo, lq - 1), hi - 1, after=dep); it.append(m); dep = [(m, 1)]
            x = Item([d], lq, hi, units=2, after=dep); it.append(x); prev = x
            if post:
                y = Item(post, lo, hi + 1, after=[(x, 0)]); it.append(y); prev = y
    code += flat(dmaW(0, 0)) + flat(ldX(0, 0)) + flat(dmaW(1, 1)) + flat(ldX(1, 1)) + flat(dmaW(2, 2))
    E(f'''
    s_mov_b32 s{SK}, s92
    s_mov_b32 s{SK+1}, s93
    s_mov_b32 s{SK+2}, {16*MB}
    s_mov_b32 s{SK+3}, 0x20000
    s_mov_b32 s{SV}, s94
    s_mov_b32 s{SV+1}, s95
    s_mov_b32 s{SV+2}, {16*MB}
    s_mov_b32 s{SV+3}, 0x20000
    s_add_u32 s{SH}, s4, {WS_H}
    s_addc_u32 s{SH+1}, s5, 0
    s_mov_b32 s{SH+3}, 0x20000
    s_add_u32 s{SO}, s4, {WS_O}
    s_addc_u32 s{SO+1}, s5, 0
    s_mov_b32 s{SO+2}, {16*MB}
    s_mov_b32 s{SO+3}, 0x20000
    s_mov_b32 s{sTHR}, {THR}
    s_mov_b32 s{sQS}, {f2u(QSCALE)}
    s_mov_b32 s{sQS+1}, {f2u(QSCALE)}
    s_mov_b32 s{sNEG}, 0xbfb8aa3b
    s_mov_b32 s{sNEG+1}, 0xbfb8aa3b
    v_lshrrev_b32 v{vT[2]}, 2, v{vL}
    v_mul_u32_u24 v{vT[2]}, 1056, v{vT[2]}
    v_and_b32 v{vT[3]}, 3, v{vL}
    v_lshl_add_u32 v{vV[0]}, v{vT[3]}, 3, v{vT[2]}
    v_add_u32 v{vV[1]}, {2*SLOT}, v{vV[0]}
    v_lshl_add_u32 v{vAq[0]}, v{vT[3]}, 4, v{vT[2]}
    v_add_u32 v{vAq[1]}, {2*SLOT}, v{vAq[0]}
    v_mul_u32_u24 v{vK[0]}, 1056, v{vT[1]}
    v_lshl_add_u32 v{vK[0]}, v{vT[0]}, 4, v{vK[0]}
    v_add_u32 v{vK[1]}, {2*SLOT}, v{vK[0]}
    ''')
    for r in range(4): E(f'v_mov_b32 v{ONE + r}, 0x3f803f80\nv_mov_b32 v{LL + r}, 0')
    def rdW(slot, nb):
        r = []
        for ks in range(2):
            for h in range(2):
                dst = vr(WF + (nb % 4)*8 + ks*4 + h*2, 2)
                base = (slot % 2)*SLOT + (2*ks + h)*256
                if nb < 8: r.append(I(f'ds_read_b64_tr_b16 {dst}, v{vAq[slot//2]} offset:{base + 64*(nb//2) + 8*(nb%2)}'))
                else: r.append(I(f'ds_read_b64_tr_b16 {dst}, v{vV[slot//2]} offset:{base + SUB + 32*(nb-8)}'))
        return r
    def rdK(slot, kb):
        return [I(f'ds_read_b128 {ar(KF + (kb%2)*16 + t*4, 4)}, v{vK[slot//2]} offset:{(slot%2)*SLOT + kb*256 + t*64}') for t in range(4)]
    def rdV(slot, db):
        return [I(f'ds_read_b64_tr_b16 {ar(VF + (db%4)*8 + ks*4 + h*2, 2)}, v{vV[slot//2]} offset:{(slot%2)*SLOT + SUB + (2*ks+h)*256 + db*32}')
                for ks in range(2) for h in range(2)]
    def acc1(nb, jq):
        return vr((nb*4 + jq)*4, 4) if nb < 8 else ar(((nb-8)*4 + jq)*4, 4)
    def p1_stage(s4, first=False, vmem=None, nxt='W', loop=None):
        m = []
        for nb in range(16):
            for jq in range(4):
                for ks in range(2):
                    c = '0' if (first and ks == 0) else acc1(nb, jq)
                    m.append(I(f'{MF} {acc1(nb, jq)}, {vr(WF + (nb%4)*8 + ks*4, 4)}, {ar(XB + s4*32 + (jq*2+ks)*4, 4)}, {c}'))
        it = []
        for nb in range(3, 16):
            for x in rdW(s4, nb): it.append(Item([x], (nb-3)*8, (nb-3)*8 + (5 if nb < 15 else 3)))
        BG = 13*8 + 2
        it.append(Item([vwait([('dma', 1)], lgkm0=True), I('s_barrier')], pin=BG))
        nx = (s4 + 1) % 4
        if nxt == 'W':
            for nb in range(3):
                for x in rdW(nx, nb): it.append(Item([x], max(BG + 1, (13 + nb)*8), (13 + nb)*8 + 7))
        else:
            for kb in range(2):
                for x in rdK(nx, kb): it.append(Item([x], BG + 1, 127))
        if vmem: vm_items(vmem, 0, BG - 2, it)
        if loop:
            it.append(Item(f's_sub_u32 s{sCNT}, s{sCNT}, 1', 110, 120))
        out = [marker(), vwait([('xn', 0)])] + schedule(m, it, verbose=V, name=f'p1 {s4}')
        if loop: out += L(f's_cmp_lg_u32 s{sCNT}, 0\ns_cbranch_scc1 {loop}')
        return out
    code += [vwait([('dma', 0)]), I('s_barrier')]
    if stamp: E('s_memtime s[68:69]\ns_waitcnt lgkmcnt(0)')
    for nb in range(3): code += rdW(0, nb)
    E(f's_mov_b32 s{sCNT}, 2\ns_waitcnt lgkmcnt(0)')
    def shift(g):
        return g
    grp0 = []
    for s in range(4): grp0 += p1_stage(s, first=(s == 0), vmem=ldX((s+2) % 4, 2) + dmaW((s+3) % 4, 3))
    grpL = []
    for s in range(4): grpL += p1_stage(s, vmem=ldX((s+2) % 4, 2) + dmaW((s+3) % 4, 3), loop=(f'{name}_p1' if s == 3 else None))
    grpE = p1_stage(0, vmem=ldX(2, 2) + dmaW(3, 3)) + p1_stage(1, vmem=ldX(3, 2) + dmaKV(0, 3, v=False)) + \
           p1_stage(2, vmem=dmaKV(1, 3, v=False)) + p1_stage(3, vmem=dmaKV(2, 3), nxt='K')
    for ins in code:
        if hasattr(ins, 'vt'): ins.vt = (ins.vt[0], ins.vt[1] + 1)
        if hasattr(ins, 'needs'): ins.needs = [(k, r + 1) for (k, r) in ins.needs]
    g0, st = auto_lgkm(grp0)
    gl, st2 = auto_lgkm(grpL, st)
    gl2, st3 = auto_lgkm(grpL, st2)
    assert [i.text for i in gl] == [i.text for i in gl2]
    ge, st4 = auto_lgkm(grpE, st2)
    code += g0 + L(f'{name}_p1:') + gl + ge
    if stamp: E('s_memtime s[70:71]')
    E('s_nop 7')
    for jq in range(4):
        for t in range(4):
            for b in range(2):
                a = ((2*t + b)*4 + jq)*4
                E(f'''v_pk_mul_f32 {vr(a,2)}, {vr(a,2)}, s[{sQS}:{sQS+1}]
                v_pk_mul_f32 {vr(a+2,2)}, {vr(a+2,2)}, s[{sQS}:{sQS+1}]
                v_cvt_pk_bf16_f32 v{a}, v{a}, v{a+1}
                v_cvt_pk_bf16_f32 v{a+1}, v{a+2}, v{a+3}
                v_accvgpr_write_b32 a{QF + (jq*4+t)*4 + b*2}, v{a}
                v_accvgpr_write_b32 a{QF + (jq*4+t)*4 + b*2 + 1}, v{a+1}''')
    E(f'''
    s_lshl_b32 s{sT0}, s{sRB}, 2
    s_add_u32 s{sT0}, s{sT0}, s{sWAVE}
    s_mul_i32 s{sT1}, s{sT0}, {4*112*1024}
    s_lshl_b32 s{sJ1}, s{sHC}, 12
    s_add_u32 s{sT1}, s{sT1}, s{sJ1}
    v_add_u32 v{vM}, s{sT1}, v{vSt}
    s_mov_b32 s{sJ1}, {112*1024}
    s_mov_b32 s{sJ2}, {2*112*1024}
    s_mov_b32 s{sJ3}, {3*112*1024}
    ''')
    soj = ['0', f's{sJ1}', f's{sJ2}', f's{sJ3}']
    k = 0
    for jq in range(4):
        for t in range(4):
            x = 128 + (k % 2)*24; e = x + 8; o = x + 16; k += 1
            for b in range(2):
                for r in range(4): E(f'v_accvgpr_read_b32 v{x + b*4 + r}, a{((2*t+b)*4 + jq)*4 + r}')
            for p in range(4): E(f'v_pk_mul_f32 {vr(e+2*p,2)}, {vr(x+2*p,2)}, s[{sNEG}:{sNEG+1}]')
            for p in range(8): E(f'v_exp_f32 v{e+p}, v{e+p}')
            for p in range(4): E(f'v_pk_add_f32 {vr(e+2*p,2)}, {vr(e+2*p,2)}, 1.0 op_sel_hi:[1,0]')
            for p in range(8): E(f'v_rcp_f32 v{e+p}, v{e+p}')
            for p in range(4): E(f'v_pk_mul_f32 {vr(x+2*p,2)}, {vr(x+2*p,2)}, {vr(e+2*p,2)}')
            for p in range(4): E(f'v_cvt_pk_bf16_f32 v{o+p}, v{x+2*p}, v{x+2*p+1}')
            E(f'buffer_store_dwordx4 {vr(o,4)}, v{vM}, s[{SH}:{SH+3}], {soj[jq]} offen offset:{1024*t}')
    if stamp: E('s_memtime s[72:73]')
    E(f'''
    s_lshl_b32 s{sT1}, s{sT0}, 19
    s_lshl_b32 s{sJ1}, s{sHD}, 12
    s_add_u32 s{sT1}, s{sT1}, s{sJ1}
    v_add_u32 v{vSt}, s{sT1}, v{vSt}
    s_mov_b32 s{sJ1}, {128*1024}
    s_mov_b32 s{sJ2}, {2*128*1024}
    s_mov_b32 s{sJ3}, {3*128*1024}
    ''')
    def Sreg(buf, e):
        jq, ks, b, r = e >> 4, (e >> 3) & 1, (e >> 2) & 1, e & 3
        return Sb[buf] + ((2*ks + b)*4 + jq)*4 + r
    def Preg(buf, e):
        jq, ks, b, r = e >> 4, (e >> 3) & 1, (e >> 2) & 1, e & 3
        return Pb[buf] + (jq*2 + ks)*4 + b*2 + (r >> 1)
    def G(kb, buf, czero=False):
        m = []
        for jq in range(4):
            d = vr(Sb[buf] + (kb*4 + jq)*4, 4)
            for t in range(4):
                c = d if t else ('0' if czero else vr(NM + jq*4, 4))
                m.append(I(f'{MF} {d}, {ar(KF + (kb%2)*16 + t*4, 4)}, {ar(QF + (jq*4+t)*4, 4)}, {c}'))
        return m
    def H(db, buf, czero=False):
        m = []
        for jq in range(4):
            d = ar((db*4 + jq)*4, 4)
            for ks in range(2):
                c = '0' if (czero and ks == 0) else d
                m.append(I(f'{MF} {d}, {ar(VF + (db%4)*8 + ks*4, 4)}, {vr(Pb[buf] + (jq*2+ks)*4, 4)}, {c}'))
        return m
    def SUM(jq, buf):
        d = vr(TS + jq*4, 4)
        return [I(f'{MF} {d}, {vr(ONE,4)}, {vr(Pb[buf] + (jq*2+ks)*4, 4)}, {d if ks else "0"}') for ks in range(2)]
    RO = 8
    stubs = []
    def iteration(n4, qk=True, pv=True, pv0=False, sm=True, e0=RO, pre_next=True, vmem=None, nxt=(True, True), loop=None, tag=''):
        p = n4 & 1; slot = (n4 + 1) % 4; nx = (slot + 1) % 4
        seq = []; pos = {}
        def add(key, ms):
            pos[key] = (len(seq), len(seq) + len(ms) - 1); seq.extend(ms)
        order = ['G0', 'H0', 'S0', 'H1', 'G1', 'S1', 'H2', 'H3', 'G2', 'S2', 'H4', 'H5', 'H6', 'S3', 'H7', 'G3']
        if not pv: order = ['G0', 'G1', 'S0', 'G2', 'S1', 'S2', 'S3', 'G3']
        if not qk: order = ['H0', 'H1', 'S0', 'H2', 'H3', 'H4', 'S1', 'H5', 'H6', 'S2', 'H7', 'S3']
        for key in order:
            i = int(key[1]) if key != 'PAD' else 0
            if key[0] == 'G' and qk: add(key, G(i, 1 - p))
            if key[0] == 'H' and pv: add(key, H(i, 1 - p, pv0))
            if key[0] == 'S' and sm: add(key, SUM(i, p))
        n = len(seq)
        dense = not (qk and pv)
        it = []
        chk = pos['G3'][0] - 1 if qk else n - 1
        def sm_items(buf, es, lo, hi, dl):
            prev_exp = {}; prev = None
            for q, e in enumerate(es):
                l_ = lo + (hi - lo) * q // max(1, len(es))
                dep = [(prev, 0 if dense else 1)] if prev else []
                if e - 8 in cvts: dep.append((cvts[e - 8], 0))
                x = Item(f'v_exp_f32 v{ET + e % 8}, v{Sreg(buf, e)}', max(lo, l_ - 3), min(dl(e) - 1, l_ + 1), after=dep, prio=1); it.append(x); prev = x
                if e % 2 == 1:
                    c = Item(f'v_cvt_pk_bf16_f32 v{Preg(buf, e)}, v{ET + (e-1) % 8}, v{ET + e % 8}', lo, min(dl(e), l_ + 5), after=[(x, 1)])
                    it.append(c); cvts[e] = c; cvts[e - 1] = c
        cvts = {}
        if sm:
            dl = lambda e: pos[f'S{e >> 4}'][0] - 2
            es = list(range(e0, 64))
            lo = 0
            if dense: sm_items(p, es, 0, pos['S3'][0] - (6 if pv else 10), dl)
            for jq in range(4):
                if dense: break
                ej = [e for e in es if e >> 4 == jq]
                hi = pos[f'S{jq}'][0] - 3
                sm_items(p, ej, lo, hi, dl)
                lo = hi + 1
        cvts = {}
        if pre_next:
            assert qk
            sm_items(1 - p, list(range(RO)), chk + 1, n - 2, lambda e: n - 1)
        BG = None
        last_read = 0
        if qk:
            for kb in (1, 2, 3):
                lo = 0 if kb == 1 else pos[f'G{kb-2}'][1]
                hi = pos[f'G{kb}'][0] - 8
                if kb == 3 and pv: hi = min(hi, pos['H5'][0])
                for x in rdK(slot, kb): it.append(Item([x], lo, hi))
                last_read = max(last_read, hi)
        if pv:
            for db in range(2, 8):
                lo = 0 if db < 4 else pos[f'H{db-4}'][1]
                hi = pos[f'H{db}'][0] - 8
                if db == 7: hi = min(hi, pos['H5'][0])
                for x in rdV(slot, db): it.append(Item([x], lo, hi))
                last_read = max(last_read, hi)
        if nxt is not None:
            BG = last_read + 7
            it.append(Item([vwait([('dma', 1)], lgkm0=True), I('s_barrier')], pin=BG))
            if nxt[0]:
                lo = max(BG + 1, pos['G2'][1] if qk else 0)
                for x in rdK(nx, 0): it.append(Item([x], lo, n - 8))
            if nxt[1]:
                for db in range(2):
                    lo = max(BG + 1, pos[f'H{4+db}'][1] if pv else 0)
                    for x in rdV(nx, db): it.append(Item([x], lo, n - 1))
        if vmem: vm_items(vmem, 0, BG - 2, it)
        if sm:
            m3 = f'v_max3_f32 v{vT[0]}, v{TS}, v{TS+4}, v{TS+8}'
            early = pos['S2'][1] + 9 <= chk - 1
            if early: it.append(Item(m3, pos['S2'][1] + 9, chk - 1))
            lab = f'{name}_fb{tag}'
            pad = max(0, 9 - (chk - pos['S3'][1]))
            ins = (f's_nop {pad}\n' if pad else '') + ('' if early else m3 + '\n') + f'v_max_f32 v{vT[0]}, v{vT[0]}, v{TS+12}\nv_cmp_lt_f32 vcc, s{sTHR}, v{vT[0]}\ns_cbranch_vccnz {lab}\n{lab}_ret:'
            ck = Item(ins, pin=chk, units=2); it.append(ck)
            stubs.append(f'{lab}:\ns_call_b64 s[{sRET}:{sRET+1}], {name}_fix{p}\ns_branch {lab}_ret')
            if chk < n - 1:
                for jq in range(4): it.append(Item(f'v_add_f32 v{LL+jq}, v{LL+jq}, v{TS+jq*4}', chk + 1, n - 1))
        if loop: it.append(Item(f's_sub_u32 s{sCNT}, s{sCNT}, 1', 60, 100))
        out = schedule(seq, it, budget=(4 if dense and sm else 2), verbose=V, name=f'it{tag}')
        if sm:
            k0 = out.index(ck.ins[0]); kn = k0 + len(ck.ins)
            ke = kn
            while ke < len(out) and out[ke].kind != 'mfma': ke += 1
            out = out[:k0] + out[kn:ke] + out[k0:kn] + out[ke:]
            if chk == n - 1:
                for jq in range(4): out += L(f'v_add_f32 v{LL+jq}, v{LL+jq}, v{TS+jq*4}')
        out = [marker()] + out
        if loop: out += L(f's_cmp_lg_u32 s{sCNT}, 0\ns_cbranch_scc1 {loop}')
        return out
    seq = G(0, 0, True) + G(1, 0, True) + G(2, 0, True) + G(3, 0, True)
    it = []
    for x in rdK(0, 2): it.append(Item([x], 15, 24))
    for x in rdK(0, 3): it.append(Item([x], 31, 36))
    it.append(Item([vwait([('dma', 1)], lgkm0=True), I('s_barrier')], pin=44))
    for x in rdK(1, 0): it.append(Item([x], 47, 56))
    vm_items(dmaKV(3, 3), 0, 42, it)
    qk0 = [marker(), I('s_nop 1')] + schedule(seq, it, verbose=V, name='qk0')
    def maxfix(buf, init):
        o = 's_nop 7\n'
        for jq in range(4):
            regs = [Sb[buf] + (kb*4 + jq)*4 + r for kb in range(4) for r in range(4)]
            t = ET + jq
            o += f'v_max3_f32 v{t}, v{regs[0]}, v{regs[1]}, v{regs[2]}\n'
            for q in range(3, 15, 2): o += f'v_max3_f32 v{t}, v{t}, v{regs[q]}, v{regs[q+1]}\n'
            o += f'v_max_f32 v{t}, v{t}, v{regs[15]}\n'
        for sw in ('v_permlane16_swap_b32', 'v_permlane32_swap_b32'):
            for jq in range(4): o += f'v_mov_b32 v{ET+4+jq}, v{ET+jq}\n'
            o += 's_nop 1\n'
            for jq in range(4): o += f'{sw} v{ET+jq}, v{ET+4+jq}\n'
            for jq in range(4): o += f'v_max_f32 v{ET+jq}, v{ET+jq}, v{ET+4+jq}\n'
        if not init:
            for jq in range(4): o += f'v_max_f32 v{ET+jq}, 0, v{ET+jq}\n'
        for jq in range(4):
            for r in range(4):
                o += (f'v_sub_f32 v{NM+jq*4+r}, 0, v{ET+jq}\n' if init else f'v_sub_f32 v{NM+jq*4+r}, v{NM+jq*4+r}, v{ET+jq}\n')
        for kb in range(4):
            for jq in range(4):
                for r in range(4):
                    a = Sb[buf] + (kb*4 + jq)*4 + r
                    o += f'v_sub_f32 v{a}, v{a}, v{ET+jq}\n'
        return o
    att = qk0 + L(maxfix(0, True))
    it0 = iteration(0, pv=False, e0=0, vmem=dmaKV(0, 3), tag='0')
    it1 = iteration(1, pv0=True, vmem=dmaKV(1, 3), tag='1')
    pre_att, st = auto_lgkm(att + it0 + it1, st4)
    body = []
    for q in range(4):
        n4 = (2 + q) % 4
        body += iteration(n4, vmem=dmaKV(n4, 3), loop=(f'{name}_att' if q == 3 else None), tag=f'L{q}')
    b1, s1 = auto_lgkm(body, st); b2, s2 = auto_lgkm(body, s1)
    assert [i.text for i in b1] == [i.text for i in b2]
    tail = iteration(2, nxt=(False, True), tag='30') + iteration(3, qk=False, pre_next=False, nxt=(False, True), tag='31') + \
           iteration(0, qk=False, sm=False, pre_next=False, nxt=None, tag='32')
    tl, _ = auto_lgkm(tail, s1)
    code += pre_att + L(f's_mov_b32 s{sCNT}, 7\n{name}_att:') + b1 + tl
    if stamp: E('s_memtime s[74:75]')
    for jq in range(4): E(f'v_rcp_f32 v{ET + 2*jq}, v{LL + jq}')
    E('s_nop 3')
    for jq in range(4): E(f'v_mov_b32 v{ET + 2*jq + 1}, v{ET + 2*jq}')
    k = 0
    for jq in range(4):
        for t in range(4):
            x = (k % 4)*12; o = x + 8; k += 1
            for b in range(2):
                for r in range(4): E(f'v_accvgpr_read_b32 v{x + b*4 + r}, a{((2*t+b)*4 + jq)*4 + r}')
            for p in range(4): E(f'v_pk_mul_f32 {vr(x+2*p,2)}, {vr(x+2*p,2)}, {vr(ET+2*jq,2)}')
            for p in range(4): E(f'v_cvt_pk_bf16_f32 v{o+p}, v{x+2*p}, v{x+2*p+1}')
            E(f'buffer_store_dwordx4 {vr(o,4)}, v{vSt}, s[{SO}:{SO+3}], {soj[jq]} offen offset:{1024*t}' + opt.get('ost', ''))
    if stamp:
        E('s_memtime s[76:77]\ns_waitcnt vmcnt(0)\ns_memtime s[78:79]\ns_memrealtime s[80:81]')
        code.extend(stamp_flush(9, 4, 5, WS_STAMP, sWAVE, vT[0]))
    E(f'{name}_end:\ns_endpgm')
    for sb in stubs: E(sb)
    for p in range(2):
        E(f'{name}_fix{p}:')
        E(maxfix(p, False))
        for kb in range(3):
            for jq in range(4):
                for r in range(4):
                    a = Sb[1-p] + (kb*4 + jq)*4 + r
                    E(f'v_sub_f32 v{a}, v{a}, v{ET+jq}')
        for jq in range(4): E(f'v_exp_f32 v{ET+4+jq}, -v{ET+jq}')
        E('s_nop 0')
        for jq in range(4): E(f'v_mul_f32 v{LL+jq}, v{LL+jq}, v{ET+4+jq}')
        for db in range(8):
            for jq in range(4):
                for r in range(4): E(f'v_accvgpr_read_b32 v{TS+r}, a{(db*4+jq)*4+r}')
                for r in range(4): E(f'v_mul_f32 v{TS+r}, v{TS+r}, v{ET+4+jq}')
                for r in range(4): E(f'v_accvgpr_write_b32 a{(db*4+jq)*4+r}, v{TS+r}')
        for e in range(0, 64, 2):
            E(f'v_exp_f32 v{TS}, v{Sreg(p, e)}\nv_exp_f32 v{TS+1}, v{Sreg(p, e+1)}\ns_nop 0\nv_cvt_pk_bf16_f32 v{Preg(p, e)}, v{TS}, v{TS+1}')
        E('s_nop 1')
        for jq in range(4): code.extend(SUM(jq, p))
        E(f's_nop 7\ns_nop 1\ns_setpc_b64 s[{sRET}:{sRET+1}]')
    resolve_vm(code, [{f'{name}_p1': [1, 0], f'{name}_att': [1]*6 + [0]}])
    return code

def main_paths(name='main_kernel'):
    base = {f'{name}_p1': [1, 0], f'{name}_att': [1, 0]}
    allfb = dict(base)
    for t in ('0', '1', 'L0', 'L1', 'L2', 'L3', '30', '31'): allfb[f'{name}_fb{t}'] = [1, 1]
    return [base, allfb]

if __name__ == '__main__':
    code = gen_main(opt=dict(v=True))
    print(len(code), check_all(code, main_paths(), 'main'))
    for i in code:
        if hasattr(i, 'needs'): print(i)
```

```python
from asmlib import *

class Item:
    def __init__(self, ins, lo=0, hi=10**9, units=None, after=(), pin=None, prio=0):
        self.ins = L(ins) if not (isinstance(ins, list) and ins and isinstance(ins[0], I)) else ins
        self.lo, self.hi = lo, hi
        self.units = units if units is not None else sum(i.cost for i in self.ins) // 4
        self.after = list(after); self.gap = None; self.pin = pin; self.prio = prio

def schedule(mfmas, items, budget=2, verbose=False, name=''):
    n = len(mfmas)
    used = [0] * n
    gaps = {g: [] for g in range(n)}
    for it in items:
        if it.pin is not None:
            it.gap = it.pin; gaps[it.pin].append(it); used[it.pin] += it.units
    rest = [it for it in items if it.pin is None]
    for g in range(n):
        while True:
            cand = []
            for it in rest:
                if it.gap is not None or it.lo > g: continue
                ok = True
                for (p, d) in it.after:
                    if p.gap is None or p.gap + d > g: ok = False; break
                if ok: cand.append(it)
            if not cand: break
            cand.sort(key=lambda it: (min(it.hi, n - 1), -it.prio))
            placed = False
            for it in cand:
                must = min(it.hi, n - 1) <= g
                if used[g] + it.units <= budget or must:
                    it.gap = g; gaps[g].append(it); used[g] += it.units; placed = True
                    break
            if not placed: break
    for it in rest:
        assert it.gap is not None, ('unplaced', name, [i.text for i in it.ins])
        assert it.gap <= it.hi, ('late', name, it.gap, it.hi, [i.text for i in it.ins])
    over = sum(max(0, u - budget) for u in used)
    if verbose: print(f'sched {name}: {n} mfma, units {sum(used)}, over-budget units {over}, usage {"".join(str(min(u,9)) for u in used)}')
    out = []
    for g in range(n):
        out.append(mfmas[g])
        for it in gaps[g]: out.extend(it.ins)
    return out

class VM:
    pass

def fix_vmcnt(path_code):
    res = {}
    issued = []
    for ins in path_code:
        if ins.kind in ('vm_ld', 'vm_st', 'dma'):
            issued.append(getattr(ins, 'tag', None))
        if getattr(ins, 'need', None) is not None:
            last = max((k for k, t in enumerate(issued) if t in ins.need), default=None)
            n = 63 if last is None else len(issued) - 1 - last
            res.setdefault(id(ins), []).append(n)
    return res

def marker():
    m = I('; stage'); m.marker = True
    return m

def vtag(ins, kind, rel):
    ins.vt = (kind, rel); return ins

def vwait(needs, lgkm0=False):
    w = I('s_waitcnt vmcnt(0)' + (' lgkmcnt(0)' if lgkm0 else ''))
    w.needs = needs; w.lgkm0 = lgkm0
    return w

def resolve_vm(code, decisions_list):
    best = {}
    for dec in decisions_list:
        path = walk(code, dec, maxlen=10**7)
        cur = 0; issued = []
        for ins in path:
            if getattr(ins, 'marker', False): cur += 1
            if ins.kind in ('vm_ld', 'vm_st', 'dma'):
                vt = getattr(ins, 'vt', None)
                issued.append((vt[0], cur + vt[1]) if vt else None)
            if hasattr(ins, 'needs'):
                want = {(k, cur + r) for (k, r) in ins.needs}
                last = max((k for k, t in enumerate(issued) if t in want), default=None)
                n = 63 if last is None else min(63, len(issued) - 1 - last)
                best.setdefault(id(ins), [ins, set()])[1].add(n)
    for ins, ns in best.values():
        n = min(ns)
        ins.text = f's_waitcnt vmcnt({n})' + (' lgkmcnt(0)' if ins.lgkm0 else '')
        ins.comment = f'vm candidates {sorted(ns)}'
```

```python
from build import *
from ln import *
import gemm2 as g2
import main as mn
import sys
def make(path, stamp=None, mopt=None, gopt=None):
    l, lv = gen_ln()
    m = mn.gen_main(stamp=(stamp == 'main'), opt=mopt)
    g, nv = g2.gen_gemm2(stamp=(stamp == 'gemm2'), opt=gopt)
    assert check_all(m, mn.main_paths(), 'main') == 0
    assert check_all(g, g2.gemm2_paths(), 'gemm2') == 0
    build([('ln_kernel', l, lv, lv), ('main_kernel', m, 512, 256), ('gemm2_kernel', g, nv, min(nv, 256))],
          [('ln_kernel', 512, 256, 0), ('main_kernel', 256, 256, 4 * mn.SLOT), ('gemm2_kernel', 256, 256, 4 * g2.SLOT)], path)
if __name__ == '__main__':
    make('cdna_kernels/' + KNAME + '.s')
    make('all_m.s', stamp='main')
    make('all_thr.s', mopt=dict(thr=3))
```

```python
from asmlib import *
from sched import *
from common import *

MF = 'v_mfma_f32_16x16x32_bf16'
SUB = 16896
SLOT = 2 * SUB

def gen_gemm2(name='gemm2_kernel', stamp=False, opt=None):
    opt = opt or {}
    V = opt.get('v', False)
    code = []
    E = lambda t: code.extend(L(t))
    SACT, SW, SG, SX, SOUT = 8, 12, 16, 20, 24
    sCNT, sAOFF, sWOFF, sM, sWAVE, sTYPE, sTILE, sT0, sT1, sC1, sRB, sCB = range(28, 40)
    sNEG = 40
    ACC = 0
    WF = 64
    XP = 128
    GP = 160
    vA = [192, 193]; vDa = [194, 195]; vDw = [196, 197, 198, 199]
    vL = 200; vXo = 201; vGo = 202; vOo = 203; vT = list(range(204, 220))
    NV = 224
    AB = 0
    E(f'''
    s_cmp_ge_u32 s2, 256
    s_cbranch_scc1 {name}_end
    s_load_dwordx2 s[4:5], s[0:1], {KA_WS}
    s_load_dwordx2 s[6:7], s[0:1], {KA_WO}
    s_load_dwordx2 s[44:45], s[0:1], {KA_W2}
    s_load_dwordx2 s[46:47], s[0:1], {KA_X}
    s_load_dwordx2 s[48:49], s[0:1], {KA_OUT}
    {'s_memtime s[64:65]' if stamp else ''}
    {'s_memrealtime s[66:67]' if stamp else ''}
    v_and_b32 v{vL}, 63, v0
    v_lshrrev_b32 v{vT[0]}, 6, v0
    s_nop 0
    v_readfirstlane_b32 s{sWAVE}, v{vT[0]}
    s_and_b32 s{sT0}, s2, 7          ; xcd
    s_lshr_b32 s{sT1}, s2, 3         ; j 0..31
    ''')
    if opt.get('map', 0) == 0:
        E(f'''
        s_lshr_b32 s{sTYPE}, s{sT0}, 2   ; 0 = f, 1 = s
        s_and_b32 s{sT0}, s{sT0}, 3
        s_lshr_b32 s{sRB}, s{sT0}, 1
        s_lshl_b32 s{sRB}, s{sRB}, 3
        s_lshr_b32 s{sCB}, s{sT1}, 2
        s_add_u32 s{sRB}, s{sRB}, s{sCB}     ; rb128 = (q>>1)*8 + (j>>2)
        s_and_b32 s{sCB}, s{sT0}, 1
        s_lshl_b32 s{sCB}, s{sCB}, 2
        s_and_b32 s{sT1}, s{sT1}, 3
        s_add_u32 s{sCB}, s{sCB}, s{sT1}     ; cb128 = (q&1)*4 + (j&3)
        ''')
    else:
        E(f'''
        s_lshr_b32 s{sTYPE}, s{sT1}, 4
        s_and_b32 s{sT1}, s{sT1}, 15
        s_lshr_b32 s{sRB}, s{sT0}, 1
        s_lshl_b32 s{sRB}, s{sRB}, 2
        s_lshr_b32 s{sCB}, s{sT1}, 2
        s_add_u32 s{sRB}, s{sRB}, s{sCB}
        s_and_b32 s{sCB}, s{sT0}, 1
        s_lshl_b32 s{sCB}, s{sCB}, 2
        s_and_b32 s{sT1}, s{sT1}, 3
        s_add_u32 s{sCB}, s{sCB}, s{sT1}
        ''')
    E(f'''
    s_lshl_b32 s{sTILE}, s{sRB}, 3
    s_add_u32 s{sTILE}, s{sTILE}, s{sCB}
    s_mul_i32 s{sM}, s{sWAVE}, 4224
    v_lshrrev_b32 v{vT[0]}, 4, v{vL}          ; g = l>>4
    v_and_b32 v{vT[1]}, 15, v{vL}             ; l&15
    v_lshlrev_b32 v{vT[2]}, 15, v{vT[0]}
    v_lshl_add_u32 v{vT[2]}, v{vT[1]}, 4, v{vT[2]}
    s_lshl_b32 s{sT0}, s{sWAVE}, 13
    s_lshl_b32 s{sT1}, s{sCB}, 8
    s_add_u32 s{sT0}, s{sT0}, s{sT1}
    v_add_u32 v{vDw[0]}, s{sT0}, v{vT[2]}
    v_add_u32 v{vDw[1]}, {992}, v{vDw[0]}
    v_add_u32 v{vDw[2]}, {2*992}, v{vDw[0]}
    v_add_u32 v{vDw[3]}, {3*992}, v{vDw[0]}
    s_waitcnt lgkmcnt(0)
    s_cmp_eq_u32 s{sTYPE}, 1
    s_mov_b32 s{sT0}, {WS_H}
    s_cmov_b32 s{sT0}, {WS_O}
    s_add_u32 s{SACT}, s4, s{sT0}
    s_addc_u32 s{SACT+1}, s5, 0
    s_cmp_eq_u32 s{sTYPE}, 1
    s_mov_b32 s{SACT+2}, {2048*3584*2}
    s_cmov_b32 s{SACT+2}, {2048*4096*2}
    s_mov_b32 s{SACT+3}, 0x20000
    s_cselect_b32 s{SW}, s6, s44
    s_cselect_b32 s{SW+1}, s7, s45
    s_mov_b32 s{SW+2}, {3584*1024*2}
    s_cmov_b32 s{SW+2}, {4096*1024*2}
    s_mov_b32 s{SW+3}, 0x20000
    s_cselect_b32 s{sCNT}, 7, 6
    s_mov_b32 s{sT1}, {112*1024}
    s_cmov_b32 s{sT1}, {128*1024}
    s_lshl_b32 s{sT0}, s{sRB}, 2
    s_add_u32 s{sT0}, s{sT0}, s{sWAVE}
    s_lshl_b32 s{sT0}, s{sT0}, 1
    s_mul_i32 s{sT0}, s{sT0}, s{sT1}
    v_lshlrev_b32 v{vDa[0]}, 4, v{vL}
    v_add_u32 v{vDa[0]}, s{sT0}, v{vDa[0]}
    v_add_u32 v{vDa[1]}, s{sT1}, v{vDa[0]}
    s_mov_b32 s{sAOFF}, 0
    s_mov_b32 s{sWOFF}, 0
    ''')
    def dmaW(slot, rel):
        g = []
        for sub in range(2):
            for jj in range(4):
                pre = [I(f's_add_u32 m0, s{sM}, {slot*SLOT + sub*SUB}')] if jj == 0 else []
                d = vtag(I(f'buffer_load_dwordx4 v{vDw[jj]}, s[{SW}:{SW+3}], s{sWOFF} offen offset:{1056*jj} lds'), 'dma', rel)
                post = [I(f's_add_u32 s{sWOFF}, s{sWOFF}, 131072')] if jj == 3 else []
                g.append((pre, d, post))
        return g
    def ldA(buf, rel):
        g = []
        for jq in range(2):
            for ks in range(4):
                d = vtag(I(f'buffer_load_dwordx4 {ar(AB + buf*32 + (jq*4+ks)*4, 4)}, v{vDa[jq]}, s[{SACT}:{SACT+3}], s{sAOFF} offen offset:{1024*ks}'), 'act', rel)
                post = [I(f's_add_u32 s{sAOFF}, s{sAOFF}, 4096')] if (jq, ks) == (1, 3) else []
                g.append(([], d, post))
        return g
    def mix(a, b):
        out = []
        for x, y in zip(a, b): out += [x, y]
        return out
    def flat(g):
        out = []
        for (pre, d, post) in g:
            out += pre + ([I('s_nop 0')] if pre else []) + [d] + post
        return out
    def vm_items(g, lo, hi, it):
        prev = None; n = len(g)
        for q, (pre, d, post) in enumerate(g):
            lq = lo + (hi - lo) * q // n
            dep = [(prev, 0)] if prev else []
            if pre:
                m = Item(pre, max(lo, lq - 1), hi - 1, after=dep); it.append(m); dep = [(m, 1)]
            x = Item([d], lq, hi, units=2, after=dep); it.append(x); prev = x
            if post:
                y = Item(post, lo, hi + 1, after=[(x, 0)]); it.append(y); prev = y
    for s in range(3): code += flat(dmaW(s, s + 1)) + flat(ldA(s, s + 1))
    E(f'''
    s_add_u32 s{SG}, s4, {WS_G}
    s_addc_u32 s{SG+1}, s5, 0
    s_mov_b32 s{SG+2}, {4*MB + 128*128}
    s_mov_b32 s{SG+3}, 0x20000
    s_mov_b32 s{SX}, s46
    s_mov_b32 s{SX+1}, s47
    s_mov_b32 s{SX+2}, {4*MB}
    s_mov_b32 s{SX+3}, 0x20000
    s_mov_b32 s{SOUT}, s48
    s_mov_b32 s{SOUT+1}, s49
    s_mov_b32 s{SOUT+2}, {4*MB}
    s_mov_b32 s{SOUT+3}, 0x20000
    s_mov_b32 s{sC1}, 32768
    s_mov_b32 s{sNEG}, 0xbfb8aa3b
    s_mov_b32 s{sNEG+1}, 0xbfb8aa3b
    ; vA = (l>>2)*1056 + (l&3)*8
    v_lshrrev_b32 v{vT[2]}, 2, v{vL}
    v_mul_u32_u24 v{vT[2]}, 1056, v{vT[2]}
    v_and_b32 v{vT[3]}, 3, v{vL}
    v_lshl_add_u32 v{vA[0]}, v{vT[3]}, 3, v{vT[2]}
    v_add_u32 v{vA[1]}, {2*SLOT}, v{vA[0]}
    s_lshl_b32 s{sT0}, s{sWAVE}, 5
    s_lshl_b32 s{sT1}, s{sRB}, 7
    s_add_u32 s{sT0}, s{sT0}, s{sT1}
    s_lshl_b32 s{sT0}, s{sT0}, 11
    s_lshl_b32 s{sT1}, s{sCB}, 8
    s_add_u32 s{sT0}, s{sT0}, s{sT1}
    v_lshlrev_b32 v{vT[1]}, 11, v{vT[1]}
    v_add_u32 v{vT[1]}, s{sT0}, v{vT[1]}
    v_lshl_add_u32 v{vXo}, v{vT[0]}, 3, v{vT[1]}
    v_lshl_add_u32 v{vOo}, v{vT[0]}, 4, v{vT[1]}
    s_lshl_b32 s{sT0}, s{sTILE}, 15
    s_lshl_b32 s{sT1}, s{sWAVE}, 13
    s_add_u32 s{sT0}, s{sT0}, s{sT1}
    v_lshlrev_b32 v{vGo}, 4, v{vL}
    v_add_u32 v{vGo}, s{sT0}, v{vGo}
    ''')
    for r in range(64): E(f'v_mov_b32 v{ACC + r}, 0')
    soj = ['0', f's{sC1}']
    def rdW(slot, nb):
        return [I(f'ds_read_b64_tr_b16 {vr(WF + (nb%4)*16 + ks*4 + h*2, 2)}, v{vA[slot//2]} offset:{(slot%2)*SLOT + (ks//2)*SUB + (2*(ks%2)+h)*256 + nb*32}')
                for ks in range(4) for h in range(2)]
    BG = 5*8 + opt.get('bgo', 3)
    def stage(s4, vmem=None, last=False, loop=None, extra=None):
        m = []
        for nb in range(8):
            for jq in range(2):
                a = vr(ACC + (nb*2 + jq)*4, 4)
                for ks in range(4):
                    m.append(I(f'{MF} {a}, {vr(WF + (nb%4)*16 + ks*4, 4)}, {ar(AB + s4*32 + (jq*4+ks)*4, 4)}, {a}'))
        it = []
        for nb in range(3, 8):
            for x in rdW(s4, nb): it.append(Item([x], (nb-3)*8, (nb-3)*8 + (9 if nb < 7 else 4)))
        if not last:
            it.append(Item([vwait([('dma', 1)], lgkm0=True), I('s_barrier')], pin=BG))
            for nb in range(3):
                for x in rdW((s4 + 1) % 4, nb): it.append(Item([x], max(BG + 1, (5 + nb)*8), min(63, (5 + nb)*8 + 9)))
        if vmem: vm_items(vmem, 0, opt.get('vmhi', 61), it)
        if extra: vm_items(extra, 0, 60, it)
        if loop: it.append(Item(f's_sub_u32 s{sCNT}, s{sCNT}, 1', 50, 60))
        out = [marker(), vwait([('act', 0)])] + schedule(m, it, verbose=V, name=f'g2 {s4}')
        if loop: out += L(f's_cmp_lg_u32 s{sCNT}, 0\ns_cbranch_scc1 {loop}')
        return out
    code += [vwait([('dma', 1)]), I('s_barrier')]
    if stamp: E('s_memtime s[68:69]\ns_waitcnt lgkmcnt(0)')
    for nb in range(3): code += rdW(0, nb)
    E('s_waitcnt lgkmcnt(0)')
    xl = []
    for nb in range(8):
        for jq in range(2):
            xl.append(([], I(f'buffer_load_dwordx2 {vr(XP + ((nb//2)*2 + jq)*4 + (nb%2)*2, 2)}, v{vXo}, s[{SX}:{SX+3}], {soj[jq]} offen offset:{nb*32}'), []))
    body = []
    for s in range(4): body += stage(s, vmem=dmaW((s+3) % 4, 3) + ldA((s+3) % 4, 3), loop=(f'{name}_loop' if s == 3 else None))
    tail = stage(0, vmem=dmaW(3, 3) + ldA(3, 3)) + stage(1, extra=xl) + stage(2) + stage(3, last=True)
    body2, st2 = auto_lgkm_loop(body)
    tail2, _ = auto_lgkm(tail, st2)
    code += L(f'{name}_loop:') + body2 + tail2
    X = E
    if stamp: X('s_memtime s[70:71]')
    X(f'''s_cmp_eq_u32 s{sTYPE}, 1
    s_cbranch_scc1 {name}_sepi
    s_mov_b32 s{sT1}, 4096
    s_nop 5''')
    def blk(c):
        p, jq = c // 2, c % 2
        return [ACC + ((2*p + b)*2 + jq)*4 + r for b in range(2) for r in range(4)]
    for c in range(8):
        R = blk(c); e = vT[(c % 2)*8]
        for q in range(4): X(f'v_pk_mul_f32 {vr(e+2*q,2)}, {vr(R[2*q],2)}, s[{sNEG}:{sNEG+1}]')
        for q in range(8): X(f'v_exp_f32 v{e+q}, v{e+q}')
        for q in range(4): X(f'v_pk_add_f32 {vr(e+2*q,2)}, {vr(e+2*q,2)}, 1.0 op_sel_hi:[1,0]')
        for q in range(8): X(f'v_rcp_f32 v{e+q}, v{e+q}')
        for q in range(4): X(f'v_pk_mul_f32 {vr(R[2*q],2)}, {vr(R[2*q],2)}, {vr(e+2*q,2)}')
        for q in range(4): X(f'v_cvt_pk_bf16_f32 v{GP + c*4 + q}, v{R[2*q]}, v{R[2*q+1]}')
        X(f'buffer_store_dwordx4 {vr(GP + c*4, 4)}, v{vGo}, s[{SG}:{SG+3}], ' + ('0' if c < 4 else f's{sT1}') + f' offen offset:{(c%4)*1024} sc0 sc1')
    if stamp:
        X('s_memtime s[72:73]\ns_waitcnt vmcnt(0)\ns_memtime s[74:75]\ns_memrealtime s[76:77]')
        code.extend(stamp_flush(7, 4, 5, WS_STAMP + opt.get('soff', 0), sWAVE, vT[0]))
    X(f'''s_waitcnt vmcnt(0)
    s_barrier
    s_cmp_lg_u32 s{sWAVE}, 0
    s_cbranch_scc1 {name}_end
    s_lshl_b32 s{sT0}, s{sTILE}, 7
    s_add_u32 s{sT0}, s{sT0}, {4*MB}
    v_mov_b32 v{vT[0]}, 1
    s_mov_b64 exec, 1
    buffer_store_dword v{vT[0]}, off, s[{SG}:{SG+3}], s{sT0} sc0 sc1
    s_endpgm
    {name}_sepi:
    s_lshl_b32 s{sT0}, s{sTILE}, 7
    s_add_u32 s{sT0}, s{sT0}, {4*MB}
    {name}_poll:
    buffer_load_dword v{vT[0]}, off, s[{SG}:{SG+3}], s{sT0} sc0 sc1
    s_waitcnt vmcnt(0)
    v_readfirstlane_b32 s{sT1}, v{vT[0]}
    s_cmp_eq_u32 s{sT1}, 1
    s_cbranch_scc1 {name}_go
    s_sleep 1
    s_branch {name}_poll
    {name}_go:
    {'s_memtime s[72:73]' if stamp else ''}
    s_mov_b32 s{sT1}, 4096''')
    for c in range(8):
        X(f'buffer_load_dwordx4 {vr(GP + c*4, 4)}, v{vGo}, s[{SG}:{SG+3}], ' + ('0' if c < 4 else f's{sT1}') + f' offen offset:{(c%4)*1024} sc0 sc1')
    for q in range(32):
        X(f'v_lshlrev_b32 v{WF + 2*q}, 16, v{XP+q}\nv_and_b32 v{WF + 2*q + 1}, 0xffff0000, v{XP+q}')
    for c in range(8):
        R = blk(c); e = vT[(c % 2)*8]
        p, jq = c // 2, c % 2
        X(f's_waitcnt vmcnt(7)')
        for q in range(4): X(f'v_lshlrev_b32 v{e+2*q}, 16, v{GP+c*4+q}\nv_and_b32 v{e+2*q+1}, 0xffff0000, v{GP+c*4+q}')
        for q in range(4): X(f'v_pk_fma_f32 {vr(R[2*q],2)}, {vr(R[2*q],2)}, {vr(e+2*q,2)}, {vr(WF + c*8 + 2*q, 2)}')
        o = XP + c*4
        for q in range(4): X(f'v_cvt_pk_bf16_f32 v{o+q}, v{R[2*q]}, v{R[2*q+1]}')
        X(f'''s_nop 0
        v_permlane32_swap_b32 v{o}, v{o+2}
        v_permlane32_swap_b32 v{o+1}, v{o+3}
        s_nop 0
        v_permlane16_swap_b32 v{o}, v{o+2}
        v_permlane16_swap_b32 v{o+1}, v{o+3}
        buffer_store_dwordx4 {vr(o,4)}, v{vOo}, s[{SOUT}:{SOUT+3}], {soj[jq]} offen offset:{p*64}''')
    if stamp:
        X('s_waitcnt vmcnt(0)\ns_memtime s[74:75]\ns_memrealtime s[76:77]')
        code.extend(stamp_flush(7, 4, 5, WS_STAMP + opt.get('soff', 0), sWAVE, vT[0]))
    X(f'{name}_end:\ns_endpgm')
    resolve_vm(code, [{f'{name}_loop': [1]*5 + [0]}, {f'{name}_loop': [1]*6 + [0]}])
    return code, NV + 128, NV

def gemm2_paths(name='gemm2_kernel'):
    return [{f'{name}_loop': [1, 1, 0]}, {f'{name}_loop': [1, 0], f'{name}_sepi': [1], f'{name}_go': [0, 1]}]

if __name__ == '__main__':
    code, nv, ao = gen_gemm2(opt=dict(v=True))
    print(len(code), check_all(code, gemm2_paths(), 'gemm2'))
    for i in code:
        if hasattr(i, 'needs'): print(i)
```

```python
from asmlib import *
from sched import *
from common import *

MF = 'v_mfma_f32_16x16x32_bf16'
SUB = 16896
SLOT = 2 * SUB
import struct
def f2u(x): return struct.unpack('<I', struct.pack('<f', x))[0]
QSCALE = (128 ** -0.5) * 1.4426950408889634

def gen_main(name='main_kernel', stamp=False, opt=None):
    opt = opt or {}
    V = opt.get('v', False)
    THR = f2u(2.0 ** opt.get('thr', 60))
    code = []
    E = lambda t: code.extend(L(t))
    SXN, SWQ, SW1, SK, SV, SH, SO = 8, 12, 16, 20, 24, 28, 32
    sXN, sWQ, sW1, sK, sV, sM, sWAVE, sHD, sHC, sRB, sT0, sT1, sCNT, sTHR, sJ1, sJ2, sJ3, sQS = range(36, 54)
    sQS = 54; sRET = 56; sNEG = 58
    WF = 128; vDq = [160, 161, 162, 163]; vD1 = [164, 165, 166, 167]; vDx = [168, 169, 170, 171]; vAq = [172, 173]
    Sb = [0, 64]; Pb = [128, 160]; NM = 192; TS = 208; LL = 224; ET = 228
    vK = [236, 237]; vV = [238, 239]; vDkv = 240; ONE = 244; vT = [241, 242, 243, 248, 249, 250]; vL = 251; vSt = 252
    vM = 253; vPF = 254; vDUM = 255
    XB = 128; QF = 128; KF = 192; VF = 224
    E(f'''
    s_cmp_ge_u32 s2, 256
    s_cbranch_scc1 {name}_end
    s_load_dwordx2 s[4:5], s[0:1], {KA_WS}
    s_load_dwordx2 s[60:61], s[0:1], {KA_WQ}
    s_load_dwordx2 s[62:63], s[0:1], {KA_W1}
    s_load_dwordx4 s[92:95], s[0:1], {KA_K}
    s_load_dwordx2 s[84:85], s[0:1], {KA_WO}
    s_load_dwordx2 s[88:89], s[0:1], {KA_W2}
    {'s_memtime s[64:65]' if stamp else ''}
    {'s_memrealtime s[66:67]' if stamp else ''}
    v_and_b32 v{vL}, 63, v0
    v_lshrrev_b32 v{vT[0]}, 6, v0
    s_nop 0
    v_readfirstlane_b32 s{sWAVE}, v{vT[0]}
    s_and_b32 s{sT0}, s2, 7          ; xcd
    s_lshr_b32 s{sT1}, s2, 3         ; j
    s_lshr_b32 s{sRB}, s{sT1}, 2
    s_and_b32 s{sT1}, s{sT1}, 3      ; j&3
    s_lshl_b32 s{sHD}, s{sT0}, 2
    s_add_u32 s{sHD}, s{sHD}, s{sT1}
    s_mul_i32 s{sHC}, s{sT0}, 3
    s_add_u32 s{sHC}, s{sHC}, 4
    s_add_u32 s{sHC}, s{sHC}, s{sT1}
    s_mov_b32 s{SW1+2}, {1024*3584*2}
    s_mov_b32 s{SH+2}, {2048*3584*2}
    s_cmp_eq_u32 s{sT1}, 3
    s_cmov_b32 s{SW1+2}, 0
    s_cmov_b32 s{SH+2}, 0
    s_cmp_lt_u32 s{sT0}, 4
    s_cmov_b32 s{sHC}, s{sHD}
    s_cmov_b32 s{SW1+2}, {1024*3584*2}
    s_cmov_b32 s{SH+2}, {2048*3584*2}
    s_mul_i32 s{sM}, s{sWAVE}, 4224
    v_lshrrev_b32 v{vT[0]}, 4, v{vL}          ; g
    v_and_b32 v{vT[1]}, 15, v{vL}             ; l&15
    v_lshlrev_b32 v{vT[2]}, 4, v{vT[1]}       ; (l&15)*16
    v_lshl_add_u32 v{vDq[0]}, v{vT[0]}, 17, v{vT[2]}
    s_lshl_b32 s{sT0}, s{sWAVE}, 15
    s_lshl_b32 s{sT1}, s{sHD}, 8
    s_add_u32 s{sT0}, s{sT0}, s{sT1}
    v_add_u32 v{vDq[0]}, s{sT0}, v{vDq[0]}
    v_add_u32 v{vDq[1]}, {8192-1056}, v{vDq[0]}
    v_add_u32 v{vDq[2]}, {2*(8192-1056)}, v{vDq[0]}
    v_add_u32 v{vDq[3]}, {3*(8192-1056)}, v{vDq[0]}
    v_mul_u32_u24 v{vD1[0]}, {16*7168}, v{vT[0]}
    v_add_u32 v{vD1[0]}, v{vD1[0]}, v{vT[2]}
    s_mul_i32 s{sT0}, s{sWAVE}, {4*7168}
    s_lshl_b32 s{sT1}, s{sHC}, 8
    s_add_u32 s{sT0}, s{sT0}, s{sT1}
    v_add_u32 v{vD1[0]}, s{sT0}, v{vD1[0]}
    v_add_u32 v{vD1[1]}, {7168-1056}, v{vD1[0]}
    v_add_u32 v{vD1[2]}, {2*(7168-1056)}, v{vD1[0]}
    v_add_u32 v{vD1[3]}, {3*(7168-1056)}, v{vD1[0]}
    s_lshl_b32 s{sT0}, s{sRB}, 2
    s_add_u32 s{sT0}, s{sT0}, s{sWAVE}
    s_lshl_b32 s{sT1}, s{sT0}, 17
    v_lshlrev_b32 v{vSt}, 4, v{vL}
    v_add_u32 v{vDx[0]}, s{sT1}, v{vSt}
    v_add_u32 v{vDx[1]}, 0x8000, v{vDx[0]}
    v_add_u32 v{vDx[2]}, 0x10000, v{vDx[0]}
    v_add_u32 v{vDx[3]}, 0x18000, v{vDx[0]}
    v_lshl_add_u32 v{vDkv}, v{vT[0]}, 12, v{vT[2]}
    s_lshl_b32 s{sT1}, s{sWAVE}, 10
    v_add_u32 v{vDkv}, s{sT1}, v{vDkv}
    s_mov_b32 s{sXN}, 0
    s_mov_b32 s{sWQ}, 0
    s_mov_b32 s{sW1}, 0
    s_lshl_b32 s{sK}, s{sHD}, 19
    s_mov_b32 s{sV}, s{sK}
    s_waitcnt lgkmcnt(0)
    s_mov_b32 s{SXN}, s4
    s_mov_b32 s{SXN+1}, s5
    s_mov_b32 s{SXN+2}, {4*MB}
    s_mov_b32 s{SXN+3}, 0x20000
    s_mov_b32 s{SWQ}, s60
    s_mov_b32 s{SWQ+1}, s61
    s_mov_b32 s{SWQ+2}, {8*MB}
    s_mov_b32 s{SWQ+3}, 0x20000
    s_mov_b32 s{SW1}, s62
    s_mov_b32 s{SW1+1}, s63
    s_mov_b32 s{SW1+3}, 0x20000
    ''')
    def dmaW(slot, rel):
        g = []
        for (srd, vo, so, sub, step) in ((SWQ, vDq, sWQ, 0, 524288), (SW1, vD1, sW1, SUB, 458752)):
            for jj in range(4):
                pre = [I(f's_add_u32 m0, s{sM}, {slot*SLOT + sub}')] if jj == 0 else []
                d = vtag(I(f'buffer_load_dwordx4 v{vo[jj]}, s[{srd}:{srd+3}], s{so} offen offset:{1056*jj} lds'), 'dma', rel)
                post = [I(f's_add_u32 s{so}, s{so}, {step}')] if jj == 3 else []
                g.append((pre, d, post))
        return g
    def dmaKV(slot, rel, k=True, v=True):
        g = []
        for (on, srd, so, sub) in ((k, SK, sK, 0), (v, SV, sV, SUB)):
            if not on: continue
            for jj in range(4):
                pre = [I(f's_add_u32 m0, s{sM}, {slot*SLOT + sub + 800*jj}')]
                d = vtag(I(f'buffer_load_dwordx4 v{vDkv}, s[{srd}:{srd+3}], s{so} offen offset:{256*jj} lds'), 'dma', rel)
                post = [I(f's_add_u32 s{so}, s{so}, 16384')] if jj == 3 else []
                g.append((pre, d, post))
        return g
    def ldX(buf, rel):
        g = []
        for jq in range(4):
            for ks in range(2):
                d = vtag(I(f'buffer_load_dwordx4 {ar(XB + buf*32 + (jq*2+ks)*4, 4)}, v{vDx[jq]}, s[{SXN}:{SXN+3}], s{sXN} offen offset:{1024*ks}'), 'xn', rel)
                post = [I(f's_add_u32 s{sXN}, s{sXN}, 2048')] if (jq, ks) == (3, 1) else []
                g.append(([], d, post))
        return g
    def flat(g):
        out = []
        for (pre, d, post) in g:
            out += pre + ([I('s_nop 0')] if pre else []) + [d] + post
        return out
    def vm_items(g, lo, hi, it):
        prev = None; n = len(g)
        for q, (pre, d, post) in enumerate(g):
            lq = lo + (hi - lo) * q // n
            dep = [(prev, 0)] if prev else []
            if pre:
                m = Item(pre, max(lo, lq - 1), hi - 1, after=dep); it.append(m); dep = [(m, 1)]
            x = Item([d], lq, hi, units=2, after=dep); it.append(x); prev = x
            if post:
                y = Item(post, lo, hi + 1, after=[(x, 0)]); it.append(y); prev = y
    code += flat(dmaW(0, 0)) + flat(ldX(0, 0)) + flat(dmaW(1, 1)) + flat(ldX(1, 1)) + flat(dmaW(2, 2))
    E(f'''
    s_mov_b32 s{SK}, s92
    s_mov_b32 s{SK+1}, s93
    s_mov_b32 s{SK+2}, {16*MB}
    s_mov_b32 s{SK+3}, 0x20000
    s_mov_b32 s{SV}, s94
    s_mov_b32 s{SV+1}, s95
    s_mov_b32 s{SV+2}, {16*MB}
    s_mov_b32 s{SV+3}, 0x20000
    s_add_u32 s{SH}, s4, {WS_H}
    s_addc_u32 s{SH+1}, s5, 0
    s_mov_b32 s{SH+3}, 0x20000
    s_add_u32 s{SO}, s4, {WS_O}
    s_addc_u32 s{SO+1}, s5, 0
    s_mov_b32 s{SO+2}, {16*MB}
    s_mov_b32 s{SO+3}, 0x20000
    s_mov_b32 s86, {8*MB}
    s_mov_b32 s87, 0x20000
    s_mov_b32 s90, {7*MB}
    s_mov_b32 s91, 0x20000
    s_lshl_b32 s{sJ1}, s2, 15
    v_lshlrev_b32 v{vPF}, 7, v0
    v_add_u32 v{vPF}, s{sJ1}, v{vPF}
    s_mov_b32 s{sTHR}, {THR}
    s_mov_b32 s{sQS}, {f2u(QSCALE)}
    s_mov_b32 s{sQS+1}, {f2u(QSCALE)}
    s_mov_b32 s{sNEG}, 0xbfb8aa3b
    s_mov_b32 s{sNEG+1}, 0xbfb8aa3b
    v_lshrrev_b32 v{vT[2]}, 2, v{vL}
    v_mul_u32_u24 v{vT[2]}, 1056, v{vT[2]}
    v_and_b32 v{vT[3]}, 3, v{vL}
    v_lshl_add_u32 v{vV[0]}, v{vT[3]}, 3, v{vT[2]}
    v_add_u32 v{vV[1]}, {2*SLOT}, v{vV[0]}
    v_lshl_add_u32 v{vAq[0]}, v{vT[3]}, 4, v{vT[2]}
    v_add_u32 v{vAq[1]}, {2*SLOT}, v{vAq[0]}
    v_mul_u32_u24 v{vK[0]}, 1056, v{vT[1]}
    v_lshl_add_u32 v{vK[0]}, v{vT[0]}, 4, v{vK[0]}
    v_add_u32 v{vK[1]}, {2*SLOT}, v{vK[0]}
    ''')
    for r in range(4): E(f'v_mov_b32 v{ONE + r}, 0x3f803f80\nv_mov_b32 v{LL + r}, 0')
    def rdW(slot, nb):
        r = []
        for ks in range(2):
            for h in range(2):
                dst = vr(WF + (nb % 4)*8 + ks*4 + h*2, 2)
                base = (slot % 2)*SLOT + (2*ks + h)*256
                if nb < 8: r.append(I(f'ds_read_b64_tr_b16 {dst}, v{vAq[slot//2]} offset:{base + 64*(nb//2) + 8*(nb%2)}'))
                else: r.append(I(f'ds_read_b64_tr_b16 {dst}, v{vV[slot//2]} offset:{base + SUB + 32*(nb-8)}'))
        return r
    def rdK(slot, kb):
        return [I(f'ds_read_b128 {ar(KF + (kb%2)*16 + t*4, 4)}, v{vK[slot//2]} offset:{(slot%2)*SLOT + kb*256 + t*64}') for t in range(4)]
    def rdV(slot, db):
        return [I(f'ds_read_b64_tr_b16 {ar(VF + (db%4)*8 + ks*4 + h*2, 2)}, v{vV[slot//2]} offset:{(slot%2)*SLOT + SUB + (2*ks+h)*256 + db*32}')
                for ks in range(2) for h in range(2)]
    def acc1(nb, jq):
        return vr((nb*4 + jq)*4, 4) if nb < 8 else ar(((nb-8)*4 + jq)*4, 4)
    def p1_stage(s4, first=False, vmem=None, nxt='W', loop=None):
        m = []
        for nb in range(16):
            for jq in range(4):
                for ks in range(2):
                    c = '0' if (first and ks == 0) else acc1(nb, jq)
                    m.append(I(f'{MF} {acc1(nb, jq)}, {vr(WF + (nb%4)*8 + ks*4, 4)}, {ar(XB + s4*32 + (jq*2+ks)*4, 4)}, {c}'))
        it = []
        for nb in range(3, 16):
            for x in rdW(s4, nb): it.append(Item([x], (nb-3)*8, (nb-3)*8 + (5 if nb < 15 else 3)))
        BG = 13*8 + 2
        it.append(Item([vwait([('dma', 1)], lgkm0=True), I('s_barrier')], pin=BG))
        nx = (s4 + 1) % 4
        if nxt == 'W':
            for nb in range(3):
                for x in rdW(nx, nb): it.append(Item([x], max(BG + 1, (13 + nb)*8), (13 + nb)*8 + 7))
        else:
            for kb in range(2):
                for x in rdK(nx, kb): it.append(Item([x], BG + 1, 127))
        if vmem: vm_items(vmem, 0, BG - 2, it)
        if loop:
            it.append(Item(f's_sub_u32 s{sCNT}, s{sCNT}, 1', 110, 120))
        out = [marker(), vwait([('xn', 0)])] + schedule(m, it, verbose=V, name=f'p1 {s4}')
        if loop: out += L(f's_cmp_lg_u32 s{sCNT}, 0\ns_cbranch_scc1 {loop}')
        return out
    code += [vwait([('dma', 0)]), I('s_barrier')]
    if stamp: E('s_memtime s[68:69]\ns_waitcnt lgkmcnt(0)')
    for nb in range(3): code += rdW(0, nb)
    E(f's_mov_b32 s{sCNT}, 2\ns_waitcnt lgkmcnt(0)')
    def shift(g):
        return g
    grp0 = []
    for s in range(4): grp0 += p1_stage(s, first=(s == 0), vmem=ldX((s+2) % 4, 2) + dmaW((s+3) % 4, 3))
    grpL = []
    for s in range(4): grpL += p1_stage(s, vmem=ldX((s+2) % 4, 2) + dmaW((s+3) % 4, 3), loop=(f'{name}_p1' if s == 3 else None))
    grpE = p1_stage(0, vmem=ldX(2, 2) + dmaW(3, 3)) + p1_stage(1, vmem=ldX(3, 2) + dmaKV(0, 3, v=False)) + \
           p1_stage(2, vmem=dmaKV(1, 3, v=False)) + p1_stage(3, vmem=dmaKV(2, 3), nxt='K')
    for ins in code:
        if hasattr(ins, 'vt'): ins.vt = (ins.vt[0], ins.vt[1] + 1)
        if hasattr(ins, 'needs'): ins.needs = [(k, r + 1) for (k, r) in ins.needs]
    g0, st = auto_lgkm(grp0)
    gl, st2 = auto_lgkm(grpL, st)
    gl2, st3 = auto_lgkm(grpL, st2)
    assert [i.text for i in gl] == [i.text for i in gl2]
    ge, st4 = auto_lgkm(grpE, st2)
    code += g0 + L(f'{name}_p1:') + gl + ge
    if stamp: E('s_memtime s[70:71]')
    E('s_nop 7')
    for jq in range(4):
        for t in range(4):
            for b in range(2):
                a = ((2*t + b)*4 + jq)*4
                E(f'''v_pk_mul_f32 {vr(a,2)}, {vr(a,2)}, s[{sQS}:{sQS+1}]
                v_pk_mul_f32 {vr(a+2,2)}, {vr(a+2,2)}, s[{sQS}:{sQS+1}]
                v_cvt_pk_bf16_f32 v{a}, v{a}, v{a+1}
                v_cvt_pk_bf16_f32 v{a+1}, v{a+2}, v{a+3}
                v_accvgpr_write_b32 a{QF + (jq*4+t)*4 + b*2}, v{a}
                v_accvgpr_write_b32 a{QF + (jq*4+t)*4 + b*2 + 1}, v{a+1}''')
    E(f'''
    s_lshl_b32 s{sT0}, s{sRB}, 2
    s_add_u32 s{sT0}, s{sT0}, s{sWAVE}
    s_mul_i32 s{sT1}, s{sT0}, {4*112*1024}
    s_lshl_b32 s{sJ1}, s{sHC}, 12
    s_add_u32 s{sT1}, s{sT1}, s{sJ1}
    v_add_u32 v{vM}, s{sT1}, v{vSt}
    s_mov_b32 s{sJ1}, {112*1024}
    s_mov_b32 s{sJ2}, {2*112*1024}
    s_mov_b32 s{sJ3}, {3*112*1024}
    ''')
    soj = ['0', f's{sJ1}', f's{sJ2}', f's{sJ3}']
    k = 0
    for jq in range(4):
        for t in range(4):
            x = 128 + (k % 2)*24; e = x + 8; o = x + 16; k += 1
            for b in range(2):
                for r in range(4): E(f'v_accvgpr_read_b32 v{x + b*4 + r}, a{((2*t+b)*4 + jq)*4 + r}')
            for p in range(4): E(f'v_pk_mul_f32 {vr(e+2*p,2)}, {vr(x+2*p,2)}, s[{sNEG}:{sNEG+1}]')
            for p in range(8): E(f'v_exp_f32 v{e+p}, v{e+p}')
            for p in range(4): E(f'v_pk_add_f32 {vr(e+2*p,2)}, {vr(e+2*p,2)}, 1.0 op_sel_hi:[1,0]')
            for p in range(8): E(f'v_rcp_f32 v{e+p}, v{e+p}')
            for p in range(4): E(f'v_pk_mul_f32 {vr(x+2*p,2)}, {vr(x+2*p,2)}, {vr(e+2*p,2)}')
            for p in range(4): E(f'v_cvt_pk_bf16_f32 v{o+p}, v{x+2*p}, v{x+2*p+1}')
            E(f'buffer_store_dwordx4 {vr(o,4)}, v{vM}, s[{SH}:{SH+3}], {soj[jq]} offen offset:{1024*t}')
    if stamp: E('s_memtime s[72:73]')
    E(f'''
    s_lshl_b32 s{sT1}, s{sT0}, 19
    s_lshl_b32 s{sJ1}, s{sHD}, 12
    s_add_u32 s{sT1}, s{sT1}, s{sJ1}
    v_add_u32 v{vSt}, s{sT1}, v{vSt}
    s_mov_b32 s{sJ1}, {128*1024}
    s_mov_b32 s{sJ2}, {2*128*1024}
    s_mov_b32 s{sJ3}, {3*128*1024}
    ''')
    def Sreg(buf, e):
        jq, ks, b, r = e >> 4, (e >> 3) & 1, (e >> 2) & 1, e & 3
        return Sb[buf] + ((2*ks + b)*4 + jq)*4 + r
    def Preg(buf, e):
        jq, ks, b, r = e >> 4, (e >> 3) & 1, (e >> 2) & 1, e & 3
        return Pb[buf] + (jq*2 + ks)*4 + b*2 + (r >> 1)
    def G(kb, buf, czero=False):
        m = []
        for jq in range(4):
            d = vr(Sb[buf] + (kb*4 + jq)*4, 4)
            for t in range(4):
                c = d if t else ('0' if czero else vr(NM + jq*4, 4))
                m.append(I(f'{MF} {d}, {ar(KF + (kb%2)*16 + t*4, 4)}, {ar(QF + (jq*4+t)*4, 4)}, {c}'))
        return m
    def H(db, buf, czero=False):
        m = []
        for jq in range(4):
            d = ar((db*4 + jq)*4, 4)
            for ks in range(2):
                c = '0' if (czero and ks == 0) else d
                m.append(I(f'{MF} {d}, {ar(VF + (db%4)*8 + ks*4, 4)}, {vr(Pb[buf] + (jq*2+ks)*4, 4)}, {c}'))
        return m
    def SUM(jq, buf):
        d = vr(TS + jq*4, 4)
        return [I(f'{MF} {d}, {vr(ONE,4)}, {vr(Pb[buf] + (jq*2+ks)*4, 4)}, {d if ks else "0"}') for ks in range(2)]
    RO = 8
    stubs = []
    def iteration(n4, qk=True, pv=True, pv0=False, sm=True, e0=RO, pre_next=True, vmem=None, nxt=(True, True), loop=None, tag=''):
        p = n4 & 1; slot = (n4 + 1) % 4; nx = (slot + 1) % 4
        seq = []; pos = {}
        def add(key, ms):
            pos[key] = (len(seq), len(seq) + len(ms) - 1); seq.extend(ms)
        order = ['G0', 'H0', 'S0', 'H1', 'G1', 'S1', 'H2', 'H3', 'G2', 'S2', 'H4', 'H5', 'H6', 'S3', 'H7', 'G3']
        if not pv: order = ['G0', 'G1', 'S0', 'G2', 'S1', 'S2', 'S3', 'G3']
        if not qk: order = ['H0', 'H1', 'S0', 'H2', 'H3', 'H4', 'S1', 'H5', 'H6', 'S2', 'H7', 'S3']
        for key in order:
            i = int(key[1]) if key != 'PAD' else 0
            if key[0] == 'G' and qk: add(key, G(i, 1 - p))
            if key[0] == 'H' and pv: add(key, H(i, 1 - p, pv0))
            if key[0] == 'S' and sm: add(key, SUM(i, p))
        n = len(seq)
        dense = not (qk and pv)
        it = []
        chk = pos['G3'][0] - 1 if qk else n - 1
        def sm_items(buf, es, lo, hi, dl):
            prev_exp = {}; prev = None
            for q, e in enumerate(es):
                l_ = lo + (hi - lo) * q // max(1, len(es))
                dep = [(prev, 0 if dense else 1)] if prev else []
                if e - 8 in cvts: dep.append((cvts[e - 8], 0))
                x = Item(f'v_exp_f32 v{ET + e % 8}, v{Sreg(buf, e)}', max(lo, l_ - 3), min(dl(e) - 1, l_ + 1), after=dep, prio=1); it.append(x); prev = x
                if e % 2 == 1:
                    c = Item(f'v_cvt_pk_bf16_f32 v{Preg(buf, e)}, v{ET + (e-1) % 8}, v{ET + e % 8}', lo, min(dl(e), l_ + 5), after=[(x, 1)])
                    it.append(c); cvts[e] = c; cvts[e - 1] = c
        cvts = {}
        if sm:
            dl = lambda e: pos[f'S{e >> 4}'][0] - 2
            es = list(range(e0, 64))
            lo = 0
            if dense: sm_items(p, es, 0, pos['S3'][0] - (6 if pv else 10), dl)
            for jq in range(4):
                if dense: break
                ej = [e for e in es if e >> 4 == jq]
                hi = pos[f'S{jq}'][0] - 3
                sm_items(p, ej, lo, hi, dl)
                lo = hi + 1
        cvts = {}
        if pre_next:
            assert qk
            sm_items(1 - p, list(range(RO)), chk + 1, n - 2, lambda e: n - 1)
        BG = None
        last_read = 0
        if qk:
            for kb in (1, 2, 3):
                lo = 0 if kb == 1 else pos[f'G{kb-2}'][1]
                hi = pos[f'G{kb}'][0] - 8
                if kb == 3 and pv: hi = min(hi, pos['H5'][0])
                for x in rdK(slot, kb): it.append(Item([x], lo, hi))
                last_read = max(last_read, hi)
        if pv:
            for db in range(2, 8):
                lo = 0 if db < 4 else pos[f'H{db-4}'][1]
                hi = pos[f'H{db}'][0] - 8
                if db == 7: hi = min(hi, pos['H5'][0])
                for x in rdV(slot, db): it.append(Item([x], lo, hi))
                last_read = max(last_read, hi)
        if nxt is not None:
            BG = last_read + 7
            it.append(Item([vwait([('dma', 1)], lgkm0=True), I('s_barrier')], pin=BG))
            if nxt[0]:
                lo = max(BG + 1, pos['G2'][1] if qk else 0)
                for x in rdK(nx, 0): it.append(Item([x], lo, n - 8))
            if nxt[1]:
                for db in range(2):
                    lo = max(BG + 1, pos[f'H{4+db}'][1] if pv else 0)
                    for x in rdV(nx, db): it.append(Item([x], lo, n - 1))
        if vmem: vm_items(vmem, 0, BG - 2, it)
        if sm:
            m3 = f'v_max3_f32 v{vT[0]}, v{TS}, v{TS+4}, v{TS+8}'
            early = pos['S2'][1] + 9 <= chk - 1
            if early: it.append(Item(m3, pos['S2'][1] + 9, chk - 1))
            lab = f'{name}_fb{tag}'
            pad = max(0, 9 - (chk - pos['S3'][1]))
            ins = (f's_nop {pad}\n' if pad else '') + ('' if early else m3 + '\n') + f'v_max_f32 v{vT[0]}, v{vT[0]}, v{TS+12}\nv_cmp_lt_f32 vcc, s{sTHR}, v{vT[0]}\ns_cbranch_vccnz {lab}\n{lab}_ret:'
            ck = Item(ins, pin=chk, units=2); it.append(ck)
            stubs.append(f'{lab}:\ns_call_b64 s[{sRET}:{sRET+1}], {name}_fix{p}\ns_branch {lab}_ret')
            if chk < n - 1:
                for jq in range(4): it.append(Item(f'v_add_f32 v{LL+jq}, v{LL+jq}, v{TS+jq*4}', chk + 1, n - 1))
        if loop: it.append(Item(f's_sub_u32 s{sCNT}, s{sCNT}, 1', 60, 100))
        out = schedule(seq, it, budget=(4 if dense and sm else 2), verbose=V, name=f'it{tag}')
        if sm:
            k0 = out.index(ck.ins[0]); kn = k0 + len(ck.ins)
            ke = kn
            while ke < len(out) and out[ke].kind != 'mfma': ke += 1
            out = out[:k0] + out[kn:ke] + out[k0:kn] + out[ke:]
            if chk == n - 1:
                for jq in range(4): out += L(f'v_add_f32 v{LL+jq}, v{LL+jq}, v{TS+jq*4}')
        out = [marker()] + out
        if loop: out += L(f's_cmp_lg_u32 s{sCNT}, 0\ns_cbranch_scc1 {loop}')
        return out
    seq = G(0, 0, True) + G(1, 0, True) + G(2, 0, True) + G(3, 0, True)
    it = []
    for x in rdK(0, 2): it.append(Item([x], 15, 24))
    for x in rdK(0, 3): it.append(Item([x], 31, 36))
    it.append(Item([vwait([('dma', 1)], lgkm0=True), I('s_barrier')], pin=44))
    for x in rdK(1, 0): it.append(Item([x], 47, 56))
    vm_items(dmaKV(3, 3), 0, 42, it)
    qk0 = [marker(), I('s_nop 1')] + schedule(seq, it, verbose=V, name='qk0')
    def maxfix(buf, init):
        o = 's_nop 7\n'
        for jq in range(4):
            regs = [Sb[buf] + (kb*4 + jq)*4 + r for kb in range(4) for r in range(4)]
            t = ET + jq
            o += f'v_max3_f32 v{t}, v{regs[0]}, v{regs[1]}, v{regs[2]}\n'
            for q in range(3, 15, 2): o += f'v_max3_f32 v{t}, v{t}, v{regs[q]}, v{regs[q+1]}\n'
            o += f'v_max_f32 v{t}, v{t}, v{regs[15]}\n'
        for sw in ('v_permlane16_swap_b32', 'v_permlane32_swap_b32'):
            for jq in range(4): o += f'v_mov_b32 v{ET+4+jq}, v{ET+jq}\n'
            o += 's_nop 1\n'
            for jq in range(4): o += f'{sw} v{ET+jq}, v{ET+4+jq}\n'
            for jq in range(4): o += f'v_max_f32 v{ET+jq}, v{ET+jq}, v{ET+4+jq}\n'
        if not init:
            for jq in range(4): o += f'v_max_f32 v{ET+jq}, 0, v{ET+jq}\n'
        for jq in range(4):
            for r in range(4):
                o += (f'v_sub_f32 v{NM+jq*4+r}, 0, v{ET+jq}\n' if init else f'v_sub_f32 v{NM+jq*4+r}, v{NM+jq*4+r}, v{ET+jq}\n')
        for kb in range(4):
            for jq in range(4):
                for r in range(4):
                    a = Sb[buf] + (kb*4 + jq)*4 + r
                    o += f'v_sub_f32 v{a}, v{a}, v{ET+jq}\n'
        return o
    att = qk0 + L(maxfix(0, True))
    it0 = iteration(0, pv=False, e0=0, vmem=dmaKV(0, 3), tag='0')
    pf = [([], I(f'buffer_load_dword v{vDUM}, v{vPF}, s[{b}:{b+3}], 0 offen'), []) for b in (84, 88)] if opt.get('pf', True) else []
    it1 = iteration(1, pv0=True, vmem=dmaKV(1, 3) + pf, tag='1')
    pre_att, st = auto_lgkm(att + it0 + it1, st4)
    body = []
    for q in range(4):
        n4 = (2 + q) % 4
        body += iteration(n4, vmem=dmaKV(n4, 3), loop=(f'{name}_att' if q == 3 else None), tag=f'L{q}')
    b1, s1 = auto_lgkm(body, st); b2, s2 = auto_lgkm(body, s1)
    assert [i.text for i in b1] == [i.text for i in b2]
    tail = iteration(2, nxt=(False, True), tag='30') + iteration(3, qk=False, pre_next=False, nxt=(False, True), tag='31') + \
           iteration(0, qk=False, sm=False, pre_next=False, nxt=None, tag='32')
    tl, _ = auto_lgkm(tail, s1)
    code += pre_att + L(f's_mov_b32 s{sCNT}, 7\n{name}_att:') + b1 + tl
    if stamp: E('s_memtime s[74:75]')
    for jq in range(4): E(f'v_rcp_f32 v{ET + 2*jq}, v{LL + jq}')
    E('s_nop 3')
    for jq in range(4): E(f'v_mov_b32 v{ET + 2*jq + 1}, v{ET + 2*jq}')
    k = 0
    for jq in range(4):
        for t in range(4):
            x = (k % 4)*12; o = x + 8; k += 1
            for b in range(2):
                for r in range(4): E(f'v_accvgpr_read_b32 v{x + b*4 + r}, a{((2*t+b)*4 + jq)*4 + r}')
            for p in range(4): E(f'v_pk_mul_f32 {vr(x+2*p,2)}, {vr(x+2*p,2)}, {vr(ET+2*jq,2)}')
            for p in range(4): E(f'v_cvt_pk_bf16_f32 v{o+p}, v{x+2*p}, v{x+2*p+1}')
            E(f'buffer_store_dwordx4 {vr(o,4)}, v{vSt}, s[{SO}:{SO+3}], {soj[jq]} offen offset:{1024*t}' + opt.get('ost', ''))
    if stamp:
        E('s_memtime s[76:77]\ns_waitcnt vmcnt(0)\ns_memtime s[78:79]\ns_memrealtime s[80:81]')
        code.extend(stamp_flush(9, 4, 5, WS_STAMP, sWAVE, vT[0]))
    E(f'{name}_end:\ns_endpgm')
    for sb in stubs: E(sb)
    for p in range(2):
        E(f'{name}_fix{p}:')
        E(maxfix(p, False))
        for kb in range(3):
            for jq in range(4):
                for r in range(4):
                    a = Sb[1-p] + (kb*4 + jq)*4 + r
                    E(f'v_sub_f32 v{a}, v{a}, v{ET+jq}')
        for jq in range(4): E(f'v_exp_f32 v{ET+4+jq}, -v{ET+jq}')
        E('s_nop 0')
        for jq in range(4): E(f'v_mul_f32 v{LL+jq}, v{LL+jq}, v{ET+4+jq}')
        for db in range(8):
            for jq in range(4):
                for r in range(4): E(f'v_accvgpr_read_b32 v{TS+r}, a{(db*4+jq)*4+r}')
                for r in range(4): E(f'v_mul_f32 v{TS+r}, v{TS+r}, v{ET+4+jq}')
                for r in range(4): E(f'v_accvgpr_write_b32 a{(db*4+jq)*4+r}, v{TS+r}')
        for e in range(0, 64, 2):
            E(f'v_exp_f32 v{TS}, v{Sreg(p, e)}\nv_exp_f32 v{TS+1}, v{Sreg(p, e+1)}\ns_nop 0\nv_cvt_pk_bf16_f32 v{Preg(p, e)}, v{TS}, v{TS+1}')
        E('s_nop 1')
        for jq in range(4): code.extend(SUM(jq, p))
        E(f's_nop 7\ns_nop 1\ns_setpc_b64 s[{sRET}:{sRET+1}]')
    resolve_vm(code, [{f'{name}_p1': [1, 0], f'{name}_att': [1]*6 + [0]}])
    return code

def main_paths(name='main_kernel'):
    base = {f'{name}_p1': [1, 0], f'{name}_att': [1, 0]}
    allfb = dict(base)
    for t in ('0', '1', 'L0', 'L1', 'L2', 'L3', '30', '31'): allfb[f'{name}_fb{t}'] = [1, 1]
    return [base, allfb]

if __name__ == '__main__':
    code = gen_main(opt=dict(v=True))
    print(len(code), check_all(code, main_paths(), 'main'))
    for i in code:
        if hasattr(i, 'needs'): print(i)
```

```python
from build import *
from ln import *
import gemm2 as g2
import main as mn
import sys
def make(path, stamp=None, mopt=None, gopt=None):
    l, lv = gen_ln()
    m = mn.gen_main(stamp=(stamp == 'main'), opt=mopt)
    g, nv, ao = g2.gen_gemm2(stamp=(stamp == 'gemm2'), opt=gopt)
    assert check_all(m, mn.main_paths(), 'main') == 0
    assert check_all(g, g2.gemm2_paths(), 'gemm2') == 0
    build([('ln_kernel', l, lv, lv), ('main_kernel', m, 512, 256), ('gemm2_kernel', g, nv, ao)],
          [('ln_kernel', 512, 256, 0), ('main_kernel', 256, 256, 4 * mn.SLOT), ('gemm2_kernel', 256, 256, 4 * g2.SLOT)], path)
if __name__ == '__main__':
    make('cdna_kernels/' + KNAME + '.s')
    make('all_g.s', stamp='gemm2')
    make('all_g_nopf.s', stamp='gemm2', mopt=dict(pf=False))
    make('all_g_vm.s', stamp='gemm2', gopt=dict(vmhi=61))
    make('all_g_map1.s', stamp='gemm2', gopt=dict(map=1))
```

```python
from asmlib import *
from common import *

def wsum(v, t):
    return f'''
    s_nop 1
    v_add_f32_dpp v{v}, v{v}, v{v} quad_perm:[1,0,3,2] row_mask:0xf bank_mask:0xf
    s_nop 1
    v_add_f32_dpp v{v}, v{v}, v{v} quad_perm:[2,3,0,1] row_mask:0xf bank_mask:0xf
    s_nop 1
    v_add_f32_dpp v{v}, v{v}, v{v} row_half_mirror row_mask:0xf bank_mask:0xf
    s_nop 1
    v_add_f32_dpp v{v}, v{v}, v{v} row_mirror row_mask:0xf bank_mask:0xf
    v_mov_b32 v{t}, v{v}
    s_nop 1
    v_permlane16_swap_b32 v{v}, v{t}
    v_add_f32 v{v}, v{v}, v{t}
    v_mov_b32 v{t}, v{v}
    s_nop 1
    v_permlane32_swap_b32 v{v}, v{t}
    v_add_f32 v{v}, v{v}, v{t}
    '''

def gen_ln(name='ln_kernel', stamp=False, soff=0):
    c = []
    E = lambda t: c.extend(L(t))
    E(f'''
    s_cmp_ge_u32 s2, 512
    s_cbranch_scc1 {name}_end
    s_load_dwordx2 s[4:5], s[0:1], {KA_X}
    s_load_dwordx2 s[6:7], s[0:1], {KA_WS}
    {'s_memrealtime s[64:65]' if stamp else ''}
    v_lshrrev_b32 v1, 6, v0
    v_and_b32 v2, 63, v0
    s_lshl_b32 s3, s2, 2
    v_add_u32 v1, s3, v1               ; row
    v_lshlrev_b32 v3, 11, v1
    v_lshrrev_b32 v5, 2, v2            ; ks
    v_lshl_add_u32 v3, v5, 6, v3
    v_and_b32 v6, 3, v2                ; g
    v_lshl_add_u32 v3, v6, 3, v3
    v_lshrrev_b32 v4, 4, v1
    v_lshlrev_b32 v4, 15, v4
    v_lshl_add_u32 v4, v5, 10, v4
    v_lshl_add_u32 v4, v6, 8, v4
    v_and_b32 v5, 15, v1
    v_lshl_add_u32 v4, v5, 4, v4
    s_waitcnt lgkmcnt(0)
    s_mov_b32 s8, s4
    s_mov_b32 s9, s5
    s_mov_b32 s10, {4*MB}
    s_mov_b32 s11, 0x20000
    s_mov_b32 s12, s6
    s_mov_b32 s13, s7
    s_mov_b32 s14, {WS_FLAG + 128*128}
    s_mov_b32 s15, 0x20000
    buffer_load_dwordx2 v[8:9], v3, s[8:11], 0 offen
    buffer_load_dwordx2 v[10:11], v3, s[8:11], 0 offen offset:32
    buffer_load_dwordx2 v[12:13], v3, s[8:11], 0 offen offset:1024
    buffer_load_dwordx2 v[14:15], v3, s[8:11], 0 offen offset:1056
    s_cmp_lg_u32 s2, 0
    s_cbranch_scc1 {name}_noflag
    v_lshlrev_b32 v6, 6, v0
    v_mov_b32 v7, 0
    s_mov_b32 s16, {WS_FLAG}
    buffer_store_dword v7, v6, s[12:15], s16 offen
    {name}_noflag:
    s_mov_b32 s17, 0xffff0000
    s_mov_b32 s18, 0x3a800000           ; 1/1024
    s_mov_b32 s19, 0x3727c5ac           ; 1e-5
    s_waitcnt vmcnt(0)
    ''')
    for i in range(8):
        E(f'v_lshlrev_b32 v{16+2*i}, 16, v{8+i}\nv_and_b32 v{17+2*i}, s17, v{8+i}')
    E('v_add_f32 v32, v16, v17')
    for i in range(2, 16): E(f'v_add_f32 v32, v32, v{16+i}')
    E(wsum(32, 33))
    E('v_mul_f32 v32, s18, v32')
    E('v_sub_f32 v34, v16, v32\nv_mul_f32 v35, v34, v34')
    for i in range(1, 16): E(f'v_sub_f32 v34, v{16+i}, v32\nv_fmac_f32 v35, v34, v34')
    E(wsum(35, 33))
    E('''
    v_mul_f32 v35, s18, v35
    v_cvt_pk_bf16_f32 v36, v32, v35
    v_lshlrev_b32 v32, 16, v36
    v_and_b32 v35, s17, v36
    v_add_f32 v35, s19, v35
    v_cvt_pk_bf16_f32 v35, v35, v35
    v_and_b32 v35, s17, v35
    v_sqrt_f32 v35, v35
    s_nop 0
    v_cvt_pk_bf16_f32 v35, v35, v35
    v_and_b32 v35, s17, v35
    v_rcp_f32 v35, v35
    ''')
    for i in range(8):
        a, b = 16 + 2*i, 17 + 2*i
        E(f'''v_sub_f32 v{a}, v{a}, v32
        v_sub_f32 v{b}, v{b}, v32
        v_cvt_pk_bf16_f32 v36, v{a}, v{b}
        v_lshlrev_b32 v{a}, 16, v36
        v_and_b32 v{b}, s17, v36
        v_mul_f32 v{a}, v{a}, v35
        v_mul_f32 v{b}, v{b}, v35
        v_cvt_pk_bf16_f32 v{8+i}, v{a}, v{b}''')
    E(f'''
    s_mov_b32 s16, 16384
    buffer_store_dwordx4 v[8:11], v4, s[12:15], 0 offen
    buffer_store_dwordx4 v[12:15], v4, s[12:15], s16 offen
    ''')
    if stamp:
        E('s_waitcnt vmcnt(0)\ns_memrealtime s[66:67]\nv_lshrrev_b32 v1, 6, v0\ns_nop 0\nv_readfirstlane_b32 s33, v1')
        c.extend(stamp_flush(2, 6, 7, WS_STAMP + soff, 33, 36))
    E(f'{name}_end:\ns_endpgm')
    return c, 40

if __name__ == '__main__':
    code, nv = gen_ln()
    print(len(code), check_all(code, [{}, {'ln_kernel_noflag': [1]}], 'ln'))
```

```python
from asmlib import *
from sched import *
from common import *

MF = 'v_mfma_f32_16x16x32_bf16'
SUB = 16896
SLOT = 2 * SUB
import struct
def f2u(x): return struct.unpack('<I', struct.pack('<f', x))[0]
QSCALE = (128 ** -0.5) * 1.4426950408889634

def gen_main(name='main_kernel', stamp=False, opt=None):
    opt = opt or {}
    V = opt.get('v', False)
    THR = f2u(2.0 ** opt.get('thr', 60))
    code = []
    E = lambda t: code.extend(L(t))
    SXN, SWQ, SW1, SK, SV, SH, SO = 8, 12, 16, 20, 24, 28, 32
    sXN, sWQ, sW1, sK, sV, sM, sWAVE, sHD, sHC, sRB, sT0, sT1, sCNT, sTHR, sJ1, sJ2, sJ3, sQS = range(36, 54)
    sPF = 53; sQS = 54; sRET = 56; sNEG = 58
    WF = 128; vDq = [160, 161, 162, 163]; vD1 = [164, 165, 166, 167]; vDx = [168, 169, 170, 171]; vAq = [172, 173]
    Sb = [0, 64]; Pb = [128, 160]; NM = 192; TS = 208; LL = 224; ET = 228
    vK = [236, 237]; vV = [238, 239]; vDkv = 240; ONE = 244; vT = [241, 242, 243, 248, 249, 250]; vL = 251; vSt = 252
    vM = 253; vPF = 254; vDUM = 255
    XB = 128; QF = 128; KF = 192; VF = 224
    E(f'''
    s_cmp_ge_u32 s2, 256
    s_cbranch_scc1 {name}_end
    s_load_dwordx2 s[4:5], s[0:1], {KA_WS}
    s_load_dwordx2 s[60:61], s[0:1], {KA_WQ}
    s_load_dwordx2 s[62:63], s[0:1], {KA_W1}
    s_load_dwordx4 s[92:95], s[0:1], {KA_K}
    s_load_dwordx2 s[84:85], s[0:1], {KA_WO}
    s_load_dwordx2 s[96:97], s[0:1], {KA_W2}
    {'s_memtime s[64:65]' if stamp else ''}
    {'s_memrealtime s[66:67]' if stamp else ''}
    v_and_b32 v{vL}, 63, v0
    v_lshrrev_b32 v{vT[0]}, 6, v0
    s_nop 0
    v_readfirstlane_b32 s{sWAVE}, v{vT[0]}
    s_and_b32 s{sT0}, s2, 7          ; xcd
    s_lshr_b32 s{sT1}, s2, 3         ; j
    s_lshr_b32 s{sRB}, s{sT1}, 2
    s_and_b32 s{sT1}, s{sT1}, 3      ; j&3
    s_lshl_b32 s{sHD}, s{sT0}, 2
    s_add_u32 s{sHD}, s{sHD}, s{sT1}
    s_mul_i32 s{sHC}, s{sT0}, 3
    s_add_u32 s{sHC}, s{sHC}, 4
    s_add_u32 s{sHC}, s{sHC}, s{sT1}
    s_mov_b32 s{SW1+2}, {1024*3584*2}
    s_mov_b32 s{SH+2}, {2048*3584*2}
    s_cmp_eq_u32 s{sT1}, 3
    s_cmov_b32 s{SW1+2}, 0
    s_cmov_b32 s{SH+2}, 0
    s_cmp_lt_u32 s{sT0}, 4
    s_cmov_b32 s{sHC}, s{sHD}
    s_cmov_b32 s{SW1+2}, {1024*3584*2}
    s_cmov_b32 s{SH+2}, {2048*3584*2}
    s_mul_i32 s{sM}, s{sWAVE}, 4224
    v_lshrrev_b32 v{vT[0]}, 4, v{vL}          ; g
    v_and_b32 v{vT[1]}, 15, v{vL}             ; l&15
    v_lshlrev_b32 v{vT[2]}, 4, v{vT[1]}       ; (l&15)*16
    v_lshl_add_u32 v{vDq[0]}, v{vT[0]}, 17, v{vT[2]}
    s_lshl_b32 s{sT0}, s{sWAVE}, 15
    s_lshl_b32 s{sT1}, s{sHD}, 8
    s_add_u32 s{sT0}, s{sT0}, s{sT1}
    v_add_u32 v{vDq[0]}, s{sT0}, v{vDq[0]}
    v_add_u32 v{vDq[1]}, {8192-1056}, v{vDq[0]}
    v_add_u32 v{vDq[2]}, {2*(8192-1056)}, v{vDq[0]}
    v_add_u32 v{vDq[3]}, {3*(8192-1056)}, v{vDq[0]}
    v_mul_u32_u24 v{vD1[0]}, {16*7168}, v{vT[0]}
    v_add_u32 v{vD1[0]}, v{vD1[0]}, v{vT[2]}
    s_mul_i32 s{sT0}, s{sWAVE}, {4*7168}
    s_lshl_b32 s{sT1}, s{sHC}, 8
    s_add_u32 s{sT0}, s{sT0}, s{sT1}
    v_add_u32 v{vD1[0]}, s{sT0}, v{vD1[0]}
    v_add_u32 v{vD1[1]}, {7168-1056}, v{vD1[0]}
    v_add_u32 v{vD1[2]}, {2*(7168-1056)}, v{vD1[0]}
    v_add_u32 v{vD1[3]}, {3*(7168-1056)}, v{vD1[0]}
    s_lshl_b32 s{sT0}, s{sRB}, 2
    s_add_u32 s{sT0}, s{sT0}, s{sWAVE}
    s_lshl_b32 s{sT1}, s{sT0}, 17
    v_lshlrev_b32 v{vSt}, 4, v{vL}
    v_add_u32 v{vDx[0]}, s{sT1}, v{vSt}
    v_add_u32 v{vDx[1]}, 0x8000, v{vDx[0]}
    v_add_u32 v{vDx[2]}, 0x10000, v{vDx[0]}
    v_add_u32 v{vDx[3]}, 0x18000, v{vDx[0]}
    v_lshl_add_u32 v{vDkv}, v{vT[0]}, 12, v{vT[2]}
    s_lshl_b32 s{sT1}, s{sWAVE}, 10
    v_add_u32 v{vDkv}, s{sT1}, v{vDkv}
    s_mov_b32 s{sXN}, 0
    s_mov_b32 s{sWQ}, 0
    s_mov_b32 s{sW1}, 0
    s_lshl_b32 s{sK}, s{sHD}, 19
    s_mov_b32 s{sV}, s{sK}
    s_waitcnt lgkmcnt(0)
    s_mov_b32 s{SXN}, s4
    s_mov_b32 s{SXN+1}, s5
    s_mov_b32 s{SXN+2}, {4*MB}
    s_mov_b32 s{SXN+3}, 0x20000
    s_mov_b32 s{SWQ}, s60
    s_mov_b32 s{SWQ+1}, s61
    s_mov_b32 s{SWQ+2}, {8*MB}
    s_mov_b32 s{SWQ+3}, 0x20000
    s_mov_b32 s{SW1}, s62
    s_mov_b32 s{SW1+1}, s63
    s_mov_b32 s{SW1+3}, 0x20000
    ''')
    def dmaW(slot, rel):
        g = []
        for (srd, vo, so, sub, step) in ((SWQ, vDq, sWQ, 0, 524288), (SW1, vD1, sW1, SUB, 458752)):
            for jj in range(4):
                pre = [I(f's_add_u32 m0, s{sM}, {slot*SLOT + sub}')] if jj == 0 else []
                d = vtag(I(f'buffer_load_dwordx4 v{vo[jj]}, s[{srd}:{srd+3}], s{so} offen offset:{1056*jj} lds'), 'dma', rel)
                post = [I(f's_add_u32 s{so}, s{so}, {step}')] if jj == 3 else []
                g.append((pre, d, post))
        return g
    def dmaKV(slot, rel, k=True, v=True):
        g = []
        for (on, srd, so, sub) in ((k, SK, sK, 0), (v, SV, sV, SUB)):
            if not on: continue
            for jj in range(4):
                pre = [I(f's_add_u32 m0, s{sM}, {slot*SLOT + sub + 800*jj}')]
                d = vtag(I(f'buffer_load_dwordx4 v{vDkv}, s[{srd}:{srd+3}], s{so} offen offset:{256*jj} lds'), 'dma', rel)
                post = [I(f's_add_u32 s{so}, s{so}, 16384')] if jj == 3 else []
                g.append((pre, d, post))
        return g
    def ldX(buf, rel):
        g = []
        for jq in range(4):
            for ks in range(2):
                d = vtag(I(f'buffer_load_dwordx4 {ar(XB + buf*32 + (jq*2+ks)*4, 4)}, v{vDx[jq]}, s[{SXN}:{SXN+3}], s{sXN} offen offset:{1024*ks}'), 'xn', rel)
                post = [I(f's_add_u32 s{sXN}, s{sXN}, 2048')] if (jq, ks) == (3, 1) else []
                g.append(([], d, post))
        return g
    def flat(g):
        out = []
        for (pre, d, post) in g:
            out += pre + ([I('s_nop 0')] if pre else []) + [d] + post
        return out
    def vm_items(g, lo, hi, it):
        prev = None; n = len(g)
        for q, (pre, d, post) in enumerate(g):
            lq = lo + (hi - lo) * q // n
            dep = [(prev, 0)] if prev else []
            if pre:
                m = Item(pre, max(lo, lq - 1), hi - 1, after=dep); it.append(m); dep = [(m, 1)]
            x = Item([d], lq, hi, units=opt.get('dmau', 2), after=dep); it.append(x); prev = x
            if post:
                y = Item(post, lo, hi + 1, after=[(x, 0)]); it.append(y); prev = y
    code += flat(dmaW(0, 0)) + flat(ldX(0, 0)) + flat(dmaW(1, 1)) + flat(ldX(1, 1)) + flat(dmaW(2, 2))
    E(f'''
    s_mov_b32 s{SK}, s92
    s_mov_b32 s{SK+1}, s93
    s_mov_b32 s{SK+2}, {16*MB}
    s_mov_b32 s{SK+3}, 0x20000
    s_mov_b32 s{SV}, s94
    s_mov_b32 s{SV+1}, s95
    s_mov_b32 s{SV+2}, {16*MB}
    s_mov_b32 s{SV+3}, 0x20000
    s_add_u32 s{SH}, s4, {WS_H}
    s_addc_u32 s{SH+1}, s5, 0
    s_mov_b32 s{SH+3}, 0x20000
    s_add_u32 s{SO}, s4, {WS_O}
    s_addc_u32 s{SO+1}, s5, 0
    s_mov_b32 s{SO+2}, {16*MB}
    s_mov_b32 s{SO+3}, 0x20000
    s_mov_b32 s86, {8*MB}
    s_mov_b32 s87, 0x20000
    s_mov_b32 s98, {7*MB}
    s_mov_b32 s99, 0x20000
    s_lshl_b32 s{sJ1}, s2, 2
    s_add_u32 s{sJ1}, s{sJ1}, s{sWAVE}
    s_lshl_b32 s{sPF}, s{sJ1}, 13
    v_lshlrev_b32 v{vPF}, 7, v{vL}
    v_mov_b32 v{vDUM}, 0x40000000
    v_cmp_gt_u32 vcc, 10, v{vL}
    s_nop 1
    v_cndmask_b32 v{vPF}, v{vDUM}, v{vPF}, vcc
    s_mov_b32 s{sTHR}, {THR}
    s_mov_b32 s{sQS}, {f2u(QSCALE)}
    s_mov_b32 s{sQS+1}, {f2u(QSCALE)}
    s_mov_b32 s{sNEG}, 0xbfb8aa3b
    s_mov_b32 s{sNEG+1}, 0xbfb8aa3b
    v_lshrrev_b32 v{vT[2]}, 2, v{vL}
    v_mul_u32_u24 v{vT[2]}, 1056, v{vT[2]}
    v_and_b32 v{vT[3]}, 3, v{vL}
    v_lshl_add_u32 v{vV[0]}, v{vT[3]}, 3, v{vT[2]}
    v_add_u32 v{vV[1]}, {2*SLOT}, v{vV[0]}
    v_lshl_add_u32 v{vAq[0]}, v{vT[3]}, 4, v{vT[2]}
    v_add_u32 v{vAq[1]}, {2*SLOT}, v{vAq[0]}
    v_mul_u32_u24 v{vK[0]}, 1056, v{vT[1]}
    v_lshl_add_u32 v{vK[0]}, v{vT[0]}, 4, v{vK[0]}
    v_add_u32 v{vK[1]}, {2*SLOT}, v{vK[0]}
    ''')
    for r in range(4): E(f'v_mov_b32 v{ONE + r}, 0x3f803f80\nv_mov_b32 v{LL + r}, 0')
    def rdW(slot, nb):
        r = []
        for ks in range(2):
            for h in range(2):
                dst = vr(WF + (nb % 4)*8 + ks*4 + h*2, 2)
                base = (slot % 2)*SLOT + (2*ks + h)*256
                if nb < 8: r.append(I(f'ds_read_b64_tr_b16 {dst}, v{vAq[slot//2]} offset:{base + 64*(nb//2) + 8*(nb%2)}'))
                else: r.append(I(f'ds_read_b64_tr_b16 {dst}, v{vV[slot//2]} offset:{base + SUB + 32*(nb-8)}'))
        return r
    def rdK(slot, kb):
        return [I(f'ds_read_b128 {ar(KF + (kb%2)*16 + t*4, 4)}, v{vK[slot//2]} offset:{(slot%2)*SLOT + kb*256 + t*64}') for t in range(4)]
    def rdV(slot, db):
        return [I(f'ds_read_b64_tr_b16 {ar(VF + (db%4)*8 + ks*4 + h*2, 2)}, v{vV[slot//2]} offset:{(slot%2)*SLOT + SUB + (2*ks+h)*256 + db*32}')
                for ks in range(2) for h in range(2)]
    def acc1(nb, jq):
        return vr((nb*4 + jq)*4, 4) if nb < 8 else ar(((nb-8)*4 + jq)*4, 4)
    def p1_stage(s4, first=False, vmem=None, nxt='W', loop=None):
        m = []
        for nb in range(16):
            for jq in range(4):
                for ks in range(2):
                    c = '0' if (first and ks == 0) else acc1(nb, jq)
                    m.append(I(f'{MF} {acc1(nb, jq)}, {vr(WF + (nb%4)*8 + ks*4, 4)}, {ar(XB + s4*32 + (jq*2+ks)*4, 4)}, {c}'))
        it = []
        for nb in range(3, 16):
            for x in rdW(s4, nb): it.append(Item([x], (nb-3)*8, (nb-3)*8 + (5 if nb < 15 else 3)))
        BG = 13*8 + 2
        it.append(Item([vwait([('dma', 1)], lgkm0=True), I('s_barrier')], pin=BG))
        nx = (s4 + 1) % 4
        if nxt == 'W':
            for nb in range(3):
                for x in rdW(nx, nb): it.append(Item([x], max(BG + 1, (13 + nb)*8), (13 + nb)*8 + 7))
        else:
            for kb in range(2):
                for x in rdK(nx, kb): it.append(Item([x], BG + 1, 127))
        if vmem: vm_items(vmem, 0, BG - 2, it)
        if loop:
            it.append(Item(f's_sub_u32 s{sCNT}, s{sCNT}, 1', 110, 120))
        out = [marker(), vwait([('xn', 0)])] + schedule(m, it, verbose=V, name=f'p1 {s4}')
        if loop: out += L(f's_cmp_lg_u32 s{sCNT}, 0\ns_cbranch_scc1 {loop}')
        return out
    code += [vwait([('dma', 0)]), I('s_barrier')]
    if stamp: E('s_memtime s[68:69]\ns_waitcnt lgkmcnt(0)')
    for nb in range(3): code += rdW(0, nb)
    E(f's_mov_b32 s{sCNT}, 2\ns_waitcnt lgkmcnt(0)')
    def shift(g):
        return g
    grp0 = []
    for s in range(4): grp0 += p1_stage(s, first=(s == 0), vmem=ldX((s+2) % 4, 2) + dmaW((s+3) % 4, 3))
    grpL = []
    for s in range(4): grpL += p1_stage(s, vmem=ldX((s+2) % 4, 2) + dmaW((s+3) % 4, 3), loop=(f'{name}_p1' if s == 3 else None))
    grpE = p1_stage(0, vmem=ldX(2, 2) + dmaW(3, 3)) + p1_stage(1, vmem=ldX(3, 2) + dmaKV(0, 3, v=False)) + \
           p1_stage(2, vmem=dmaKV(1, 3, v=False)) + p1_stage(3, vmem=dmaKV(2, 3), nxt='K')
    for ins in code:
        if hasattr(ins, 'vt'): ins.vt = (ins.vt[0], ins.vt[1] + 1)
        if hasattr(ins, 'needs'): ins.needs = [(k, r + 1) for (k, r) in ins.needs]
    g0, st = auto_lgkm(grp0)
    gl, st2 = auto_lgkm(grpL, st)
    gl2, st3 = auto_lgkm(grpL, st2)
    assert [i.text for i in gl] == [i.text for i in gl2]
    ge, st4 = auto_lgkm(grpE, st2)
    code += g0 + L(f'{name}_p1:') + gl + ge
    if stamp: E('s_memtime s[70:71]')
    E('s_nop 7')
    for jq in range(4):
        for t in range(4):
            for b in range(2):
                a = ((2*t + b)*4 + jq)*4
                E(f'''v_pk_mul_f32 {vr(a,2)}, {vr(a,2)}, s[{sQS}:{sQS+1}]
                v_pk_mul_f32 {vr(a+2,2)}, {vr(a+2,2)}, s[{sQS}:{sQS+1}]
                v_cvt_pk_bf16_f32 v{a}, v{a}, v{a+1}
                v_cvt_pk_bf16_f32 v{a+1}, v{a+2}, v{a+3}
                v_accvgpr_write_b32 a{QF + (jq*4+t)*4 + b*2}, v{a}
                v_accvgpr_write_b32 a{QF + (jq*4+t)*4 + b*2 + 1}, v{a+1}''')
    E(f'''
    s_lshl_b32 s{sT0}, s{sRB}, 2
    s_add_u32 s{sT0}, s{sT0}, s{sWAVE}
    s_mul_i32 s{sT1}, s{sT0}, {4*112*1024}
    s_lshl_b32 s{sJ1}, s{sHC}, 12
    s_add_u32 s{sT1}, s{sT1}, s{sJ1}
    v_add_u32 v{vM}, s{sT1}, v{vSt}
    s_mov_b32 s{sJ1}, {112*1024}
    s_mov_b32 s{sJ2}, {2*112*1024}
    s_mov_b32 s{sJ3}, {3*112*1024}
    ''')
    soj = ['0', f's{sJ1}', f's{sJ2}', f's{sJ3}']
    k = 0
    for jq in range(4):
        for t in range(4):
            x = 128 + (k % 2)*24; e = x + 8; o = x + 16; k += 1
            for b in range(2):
                for r in range(4): E(f'v_accvgpr_read_b32 v{x + b*4 + r}, a{((2*t+b)*4 + jq)*4 + r}')
            for p in range(4): E(f'v_pk_mul_f32 {vr(e+2*p,2)}, {vr(x+2*p,2)}, s[{sNEG}:{sNEG+1}]')
            for p in range(8): E(f'v_exp_f32 v{e+p}, v{e+p}')
            for p in range(4): E(f'v_pk_add_f32 {vr(e+2*p,2)}, {vr(e+2*p,2)}, 1.0 op_sel_hi:[1,0]')
            for p in range(8): E(f'v_rcp_f32 v{e+p}, v{e+p}')
            for p in range(4): E(f'v_pk_mul_f32 {vr(x+2*p,2)}, {vr(x+2*p,2)}, {vr(e+2*p,2)}')
            for p in range(4): E(f'v_cvt_pk_bf16_f32 v{o+p}, v{x+2*p}, v{x+2*p+1}')
            E(f'buffer_store_dwordx4 {vr(o,4)}, v{vM}, s[{SH}:{SH+3}], {soj[jq]} offen offset:{1024*t}')
    if stamp: E('s_memtime s[72:73]')
    E(f'''
    s_lshl_b32 s{sT1}, s{sT0}, 19
    s_lshl_b32 s{sJ1}, s{sHD}, 12
    s_add_u32 s{sT1}, s{sT1}, s{sJ1}
    v_add_u32 v{vSt}, s{sT1}, v{vSt}
    s_mov_b32 s{sJ1}, {128*1024}
    s_mov_b32 s{sJ2}, {2*128*1024}
    s_mov_b32 s{sJ3}, {3*128*1024}
    ''')
    def Sreg(buf, e):
        jq, ks, b, r = e >> 4, (e >> 3) & 1, (e >> 2) & 1, e & 3
        return Sb[buf] + ((2*ks + b)*4 + jq)*4 + r
    def Preg(buf, e):
        jq, ks, b, r = e >> 4, (e >> 3) & 1, (e >> 2) & 1, e & 3
        return Pb[buf] + (jq*2 + ks)*4 + b*2 + (r >> 1)
    def G(kb, buf, czero=False):
        m = []
        for jq in range(4):
            d = vr(Sb[buf] + (kb*4 + jq)*4, 4)
            for t in range(4):
                c = d if t else ('0' if czero else vr(NM + jq*4, 4))
                m.append(I(f'{MF} {d}, {ar(KF + (kb%2)*16 + t*4, 4)}, {ar(QF + (jq*4+t)*4, 4)}, {c}'))
        return m
    def H(db, buf, czero=False):
        m = []
        for jq in range(4):
            d = ar((db*4 + jq)*4, 4)
            for ks in range(2):
                c = '0' if (czero and ks == 0) else d
                m.append(I(f'{MF} {d}, {ar(VF + (db%4)*8 + ks*4, 4)}, {vr(Pb[buf] + (jq*2+ks)*4, 4)}, {c}'))
        return m
    def SUM(jq, buf):
        d = vr(TS + jq*4, 4)
        return [I(f'{MF} {d}, {vr(ONE,4)}, {vr(Pb[buf] + (jq*2+ks)*4, 4)}, {d if ks else "0"}') for ks in range(2)]
    RO = 8
    stubs = []
    def iteration(n4, qk=True, pv=True, pv0=False, sm=True, e0=RO, pre_next=True, vmem=None, nxt=(True, True), loop=None, tag=''):
        p = n4 & 1; slot = (n4 + 1) % 4; nx = (slot + 1) % 4
        seq = []; pos = {}
        def add(key, ms):
            pos[key] = (len(seq), len(seq) + len(ms) - 1); seq.extend(ms)
        order = ['G0', 'H0', 'S0', 'H1', 'G1', 'S1', 'H2', 'H3', 'G2', 'S2', 'H4', 'H5', 'H6', 'S3', 'H7', 'G3']
        if not pv: order = ['G0', 'G1', 'S0', 'G2', 'S1', 'S2', 'S3', 'G3']
        if not qk: order = ['H0', 'H1', 'S0', 'H2', 'H3', 'H4', 'S1', 'H5', 'H6', 'S2', 'H7', 'S3']
        for key in order:
            i = int(key[1]) if key != 'PAD' else 0
            if key[0] == 'G' and qk: add(key, G(i, 1 - p))
            if key[0] == 'H' and pv: add(key, H(i, 1 - p, pv0))
            if key[0] == 'S' and sm: add(key, SUM(i, p))
        n = len(seq)
        dense = not (qk and pv)
        it = []
        chk = pos['G3'][0] - 1 if qk else n - 1
        def sm_items(buf, es, lo, hi, dl):
            prev_exp = {}; prev = None
            for q, e in enumerate(es):
                l_ = lo + (hi - lo) * q // max(1, len(es))
                dep = [(prev, 0 if dense else 1)] if prev else []
                if e - 8 in cvts: dep.append((cvts[e - 8], 0))
                x = Item(f'v_exp_f32 v{ET + e % 8}, v{Sreg(buf, e)}', max(lo, l_ - 3), min(dl(e) - 1, l_ + 1), after=dep, prio=1); it.append(x); prev = x
                if e % 2 == 1:
                    c = Item(f'v_cvt_pk_bf16_f32 v{Preg(buf, e)}, v{ET + (e-1) % 8}, v{ET + e % 8}', lo, min(dl(e), l_ + 5), after=[(x, 1)])
                    it.append(c); cvts[e] = c; cvts[e - 1] = c
        cvts = {}
        if sm:
            dl = lambda e: pos[f'S{e >> 4}'][0] - 2
            es = list(range(e0, 64))
            lo = 0
            if dense: sm_items(p, es, 0, pos['S3'][0] - (6 if pv else 10), dl)
            for jq in range(4):
                if dense: break
                ej = [e for e in es if e >> 4 == jq]
                hi = pos[f'S{jq}'][0] - 3
                sm_items(p, ej, lo, hi, dl)
                lo = hi + 1
        cvts = {}
        if pre_next:
            assert qk
            sm_items(1 - p, list(range(RO)), chk + 1, n - 2, lambda e: n - 1)
        BG = None
        last_read = 0
        if qk:
            for kb in (1, 2, 3):
                lo = 0 if kb == 1 else pos[f'G{kb-2}'][1]
                hi = pos[f'G{kb}'][0] - 8
                if kb == 3 and pv: hi = min(hi, pos['H5'][0])
                for x in rdK(slot, kb): it.append(Item([x], lo, hi))
                last_read = max(last_read, hi)
        if pv:
            for db in range(2, 8):
                lo = 0 if db < 4 else pos[f'H{db-4}'][1]
                hi = pos[f'H{db}'][0] - 8
                if db == 7: hi = min(hi, pos['H5'][0])
                for x in rdV(slot, db): it.append(Item([x], lo, hi))
                last_read = max(last_read, hi)
        if nxt is not None:
            BG = last_read + opt.get('bgd', 7)
            it.append(Item([vwait([('dma', 1)], lgkm0=True)] + ([] if opt.get('nobar') else [I('s_barrier')]), pin=BG))
            if nxt[0]:
                lo = max(BG + 1, pos['G2'][1] if qk else 0)
                for x in rdK(nx, 0): it.append(Item([x], lo, n - 8))
            if nxt[1]:
                for db in range(2):
                    lo = max(BG + 1, pos[f'H{4+db}'][1] if pv else 0)
                    for x in rdV(nx, db): it.append(Item([x], lo, n - 1))
        if vmem: vm_items(vmem, 0, (min(opt['vmhi'], n - 4) if 'vmhi' in opt else BG - 2), it)
        if sm:
            m3 = f'v_max3_f32 v{vT[0]}, v{TS}, v{TS+4}, v{TS+8}'
            early = pos['S2'][1] + 9 <= chk - 1
            if early: it.append(Item(m3, pos['S2'][1] + 9, chk - 1))
            lab = f'{name}_fb{tag}'
            pad = max(0, 9 - (chk - pos['S3'][1]))
            ins = (f's_nop {pad}\n' if pad else '') + ('' if early else m3 + '\n') + f'v_max_f32 v{vT[0]}, v{vT[0]}, v{TS+12}\nv_cmp_lt_f32 vcc, s{sTHR}, v{vT[0]}\ns_cbranch_vccnz {lab}\n{lab}_ret:'
            ck = Item(ins, pin=chk, units=2); it.append(ck)
            stubs.append(f'{lab}:\ns_call_b64 s[{sRET}:{sRET+1}], {name}_fix{p}\ns_branch {lab}_ret')
            if chk < n - 1:
                for jq in range(4): it.append(Item(f'v_add_f32 v{LL+jq}, v{LL+jq}, v{TS+jq*4}', chk + 1, n - 1))
        if loop: it.append(Item(f's_sub_u32 s{sCNT}, s{sCNT}, 1', 60, 100))
        out = schedule(seq, it, budget=(4 if dense and sm else 2), verbose=V, name=f'it{tag}')
        if sm:
            k0 = out.index(ck.ins[0]); kn = k0 + len(ck.ins)
            ke = kn
            while ke < len(out) and out[ke].kind != 'mfma': ke += 1
            out = out[:k0] + out[kn:ke] + out[k0:kn] + out[ke:]
            if chk == n - 1:
                for jq in range(4): out += L(f'v_add_f32 v{LL+jq}, v{LL+jq}, v{TS+jq*4}')
        out = [marker()] + out
        if loop: out += L(f's_cmp_lg_u32 s{sCNT}, 0\ns_cbranch_scc1 {loop}')
        return out
    seq = G(0, 0, True) + G(1, 0, True) + G(2, 0, True) + G(3, 0, True)
    it = []
    for x in rdK(0, 2): it.append(Item([x], 15, 24))
    for x in rdK(0, 3): it.append(Item([x], 31, 36))
    it.append(Item([vwait([('dma', 1)], lgkm0=True), I('s_barrier')], pin=44))
    for x in rdK(1, 0): it.append(Item([x], 47, 56))
    vm_items(dmaKV(3, 3), 0, 42, it)
    qk0 = [marker(), I('s_nop 1')] + schedule(seq, it, verbose=V, name='qk0')
    def maxfix(buf, init):
        o = 's_nop 7\n'
        for jq in range(4):
            regs = [Sb[buf] + (kb*4 + jq)*4 + r for kb in range(4) for r in range(4)]
            t = ET + jq
            o += f'v_max3_f32 v{t}, v{regs[0]}, v{regs[1]}, v{regs[2]}\n'
            for q in range(3, 15, 2): o += f'v_max3_f32 v{t}, v{t}, v{regs[q]}, v{regs[q+1]}\n'
            o += f'v_max_f32 v{t}, v{t}, v{regs[15]}\n'
        for sw in ('v_permlane16_swap_b32', 'v_permlane32_swap_b32'):
            for jq in range(4): o += f'v_mov_b32 v{ET+4+jq}, v{ET+jq}\n'
            o += 's_nop 1\n'
            for jq in range(4): o += f'{sw} v{ET+jq}, v{ET+4+jq}\n'
            for jq in range(4): o += f'v_max_f32 v{ET+jq}, v{ET+jq}, v{ET+4+jq}\n'
        if not init:
            for jq in range(4): o += f'v_max_f32 v{ET+jq}, 0, v{ET+jq}\n'
        for jq in range(4):
            for r in range(4):
                o += (f'v_sub_f32 v{NM+jq*4+r}, 0, v{ET+jq}\n' if init else f'v_sub_f32 v{NM+jq*4+r}, v{NM+jq*4+r}, v{ET+jq}\n')
        for kb in range(4):
            for jq in range(4):
                for r in range(4):
                    a = Sb[buf] + (kb*4 + jq)*4 + r
                    o += f'v_sub_f32 v{a}, v{a}, v{ET+jq}\n'
        return o
    att = qk0 + L(maxfix(0, True))
    it0 = iteration(0, pv=False, e0=0, vmem=dmaKV(0, 3), tag='0')
    def pf(q):
        if not opt.get('pf', True) or q not in (0, 2): return []
        b = 84 if q == 0 else 96
        return [([], I(f'buffer_load_dword v{vDUM}, v{vPF}, s[{b}:{b+3}], s{sPF} offen'), [I(f's_add_u32 s{sPF}, s{sPF}, 1280')] if q == 2 else [])]
    it1 = iteration(1, pv0=True, vmem=dmaKV(1, 3), tag='1')
    pre_att, st = auto_lgkm(att + it0 + it1, st4)
    body = []
    for q in range(4):
        n4 = (2 + q) % 4
        body += iteration(n4, vmem=([] if opt.get('nodma') else dmaKV(n4, 3)) + pf(q), loop=(f'{name}_att' if q == 3 else None), tag=f'L{q}')
    b1, s1 = auto_lgkm(body, st); b2, s2 = auto_lgkm(body, s1)
    assert [i.text for i in b1] == [i.text for i in b2]
    tail = iteration(2, nxt=(False, True), tag='30') + iteration(3, qk=False, pre_next=False, nxt=(False, True), tag='31') + \
           iteration(0, qk=False, sm=False, pre_next=False, nxt=None, tag='32')
    tl, _ = auto_lgkm(tail, s1)
    code += pre_att + L(('s_memtime s[88:89]\ns_waitcnt lgkmcnt(0)\n' if stamp else '') + f's_mov_b32 s{sCNT}, 7\n{name}_att:') + b1 + L('s_memtime s[90:91]\ns_waitcnt lgkmcnt(0)' if stamp else '') + tl
    if stamp: E('s_memtime s[74:75]')
    for jq in range(4): E(f'v_rcp_f32 v{ET + 2*jq}, v{LL + jq}')
    E('s_nop 3')
    for jq in range(4): E(f'v_mov_b32 v{ET + 2*jq + 1}, v{ET + 2*jq}')
    k = 0
    for jq in range(4):
        for t in range(4):
            x = (k % 4)*12; o = x + 8; k += 1
            for b in range(2):
                for r in range(4): E(f'v_accvgpr_read_b32 v{x + b*4 + r}, a{((2*t+b)*4 + jq)*4 + r}')
            for p in range(4): E(f'v_pk_mul_f32 {vr(x+2*p,2)}, {vr(x+2*p,2)}, {vr(ET+2*jq,2)}')
            for p in range(4): E(f'v_cvt_pk_bf16_f32 v{o+p}, v{x+2*p}, v{x+2*p+1}')
            E(f'buffer_store_dwordx4 {vr(o,4)}, v{vSt}, s[{SO}:{SO+3}], {soj[jq]} offen offset:{1024*t}' + opt.get('ost', ''))
    if stamp:
        E('s_memtime s[76:77]\ns_waitcnt vmcnt(0)\ns_memtime s[78:79]\ns_memrealtime s[80:81]')
        code.extend(stamp_flush(14, 4, 5, WS_STAMP + opt.get('soff', 0), sWAVE, vT[0]))
    E(f'{name}_end:\ns_endpgm')
    for sb in stubs: E(sb)
    for p in range(2):
        E(f'{name}_fix{p}:')
        E(maxfix(p, False))
        for kb in range(3):
            for jq in range(4):
                for r in range(4):
                    a = Sb[1-p] + (kb*4 + jq)*4 + r
                    E(f'v_sub_f32 v{a}, v{a}, v{ET+jq}')
        for jq in range(4): E(f'v_exp_f32 v{ET+4+jq}, -v{ET+jq}')
        E('s_nop 0')
        for jq in range(4): E(f'v_mul_f32 v{LL+jq}, v{LL+jq}, v{ET+4+jq}')
        for db in range(8):
            for jq in range(4):
                for r in range(4): E(f'v_accvgpr_read_b32 v{TS+r}, a{(db*4+jq)*4+r}')
                for r in range(4): E(f'v_mul_f32 v{TS+r}, v{TS+r}, v{ET+4+jq}')
                for r in range(4): E(f'v_accvgpr_write_b32 a{(db*4+jq)*4+r}, v{TS+r}')
        for e in range(0, 64, 2):
            E(f'v_exp_f32 v{TS}, v{Sreg(p, e)}\nv_exp_f32 v{TS+1}, v{Sreg(p, e+1)}\ns_nop 0\nv_cvt_pk_bf16_f32 v{Preg(p, e)}, v{TS}, v{TS+1}')
        E('s_nop 1')
        for jq in range(4): code.extend(SUM(jq, p))
        E(f's_nop 7\ns_nop 1\ns_setpc_b64 s[{sRET}:{sRET+1}]')
    resolve_vm(code, [{f'{name}_p1': [1, 0], f'{name}_att': [1]*6 + [0]}])
    return code

def main_paths(name='main_kernel'):
    base = {f'{name}_p1': [1, 0], f'{name}_att': [1, 0]}
    allfb = dict(base)
    for t in ('0', '1', 'L0', 'L1', 'L2', 'L3', '30', '31'): allfb[f'{name}_fb{t}'] = [1, 1]
    return [base, allfb]

if __name__ == '__main__':
    code = gen_main(opt=dict(v=True))
    print(len(code), check_all(code, main_paths(), 'main'))
    for i in code:
        if hasattr(i, 'needs'): print(i)
```

```python
from build import *
from ln import *
import gemm2 as g2
import main as mn
import sys
def make(path, stamp=None, mopt=None, gopt=None):
    al = stamp == 'all'
    mopt = dict(mopt or {}); gopt = dict(gopt or {})
    if al: mopt['soff'] = MB; gopt['soff'] = 2 * MB
    l, lv = gen_ln(stamp=al)
    m = mn.gen_main(stamp=(stamp == 'main' or al), opt=mopt)
    g, nv, ao = g2.gen_gemm2(stamp=(stamp == 'gemm2' or al), opt=gopt)
    assert check_all(m, mn.main_paths(), 'main') == 0
    assert check_all(g, g2.gemm2_paths(), 'gemm2') == 0
    build([('ln_kernel', l, lv, lv), ('main_kernel', m, 512, 256), ('gemm2_kernel', g, nv, ao)],
          [('ln_kernel', 512, 256, 0), ('main_kernel', 256, 256, 4 * mn.SLOT), ('gemm2_kernel', 256, 256, 4 * g2.SLOT)], path)
if __name__ == '__main__':
    make('cdna_kernels/' + KNAME + '.s')
    make('tl.s', stamp='all')
    make('tl_nopf.s', stamp='all', mopt=dict(pf=False))
    make('tl_nodma.s', stamp='all', mopt=dict(pf=False, nodma=True))
    make('tl_nobar.s', stamp='all', mopt=dict(pf=False, nobar=True))
    make('tl_nodmabar.s', stamp='all', mopt=dict(pf=False, nobar=True, nodma=True))
    make('tl_vm130.s', stamp='all', mopt=dict(vmhi=130))
```
